```python
import torch

def _softmax(x, axis=-1):
    return torch.softmax(x, dim=axis)

def _gelu(x):
    return torch.nn.functional.gelu(x, approximate='tanh')

def _silu(x):
    return torch.nn.functional.silu(x)

def _sigmoid(x):
    return torch.sigmoid(x)

def _layernorm(x, axis=-1, eps=1e-05):
    m = x.mean(dim=axis, keepdim=True)
    v = x.var(dim=axis, keepdim=True, unbiased=False)
    return (x - m) / torch.sqrt(v + eps)

def _scatter_add(tgt, idx, src, axis=0):
    return tgt.clone().index_add_(axis, idx, src)

def _segment_sum(src, seg, n):
    out = torch.zeros((n,) + src.shape[1:], dtype=src.dtype)
    return out.index_add_(0, seg, src)

def _pad(x, pw):
    flat = tuple((v for pair in reversed(pw) for v in pair))
    return torch.nn.functional.pad(x, flat)
kernel_name = 'standalone__tree_speculative_verify_tree_attention_over_candidate_token_tree__decode'

def setup_inputs():

    _w = lambda a: (lambda t: t.to(torch.bfloat16) if t.is_floating_point() else t)(torch.as_tensor(a))
    B, Hq, Hkv, T, C, D = (1, 32, 32, 1, 4096, 128)
    tree_mask = torch.zeros((B, T, T), dtype=float)
    for b in range(B):
        parent = torch.zeros(T, dtype=torch.int64)
        for i in range(1, T):
            parent[i] = int(torch.randint(0, i, (1,)).item())
        for i in range(T):
            j = i
            tree_mask[b, i, j] = 1.0
            while j > 0:
                j = parent[j]
                tree_mask[b, i, j] = 1.0
    return {'q': _w((lambda *s: torch.randn(*s, dtype=torch.bfloat16) * 0.8)(B, Hq, T, D)), 'k_cache': _w((lambda *s: torch.randn(*s, dtype=torch.bfloat16) * 0.8)(B, Hkv, C, D)), 'v_cache': _w((lambda *s: torch.randn(*s, dtype=torch.bfloat16) * 0.05)(B, Hkv, C, D)), 'k_tree': _w((lambda *s: torch.randn(*s, dtype=torch.bfloat16) * 0.8)(B, Hkv, T, D)), 'v_tree': _w((lambda *s: torch.randn(*s, dtype=torch.bfloat16) * 0.05)(B, Hkv, T, D)), 'tree_mask': _w(tree_mask)}

def reference(q, k_cache, v_cache, k_tree, v_tree, tree_mask):
    B, Hq, T, D = q.shape
    Hkv, C = (k_cache.shape[1], k_cache.shape[2])
    rep = Hq // Hkv
    kc = (lambda x, n, axis: torch.repeat_interleave(x, n, dim=axis))(k_cache, rep, axis=1)
    vc = (lambda x, n, axis: torch.repeat_interleave(x, n, dim=axis))(v_cache, rep, axis=1)
    kt = (lambda x, n, axis: torch.repeat_interleave(x, n, dim=axis))(k_tree, rep, axis=1)
    vt = (lambda x, n, axis: torch.repeat_interleave(x, n, dim=axis))(v_tree, rep, axis=1)
    k = torch.concatenate([kc, kt], axis=2)
    v = torch.concatenate([vc, vt], axis=2)
    scale = D ** (-0.5)
    scores = torch.einsum('bhqd,bhkd->bhqk', q, k) * scale
    ctx_mask = torch.ones((B, 1, T, C), dtype=scores.dtype)
    tm = tree_mask[:, None, :, :].clone()
    full_mask = torch.concatenate([ctx_mask, tm], axis=-1)
    scores = scores + (1.0 - full_mask) * -1000000000.0
    p = _softmax(scores, axis=-1)
    return torch.einsum('bhqk,bhkd->bhqd', p, v)
```

```python
import sys, argparse

NAME = "standalone__tree_speculative_verify_tree_attention_over_candidate_token_tree__decode"

HEADER = """; Kernarg layout for this problem (72 bytes, ptrs only, base s[0:1]):
"""

import struct
def f2u(x):
    return struct.unpack("<I", struct.pack("<f", x))[0]

C_SCALE = (128 ** -0.5) * 1.4426950408889634
LOG2E = 1.4426950408889634


def gen(NW=8, nt=True, stamps=False, cons=7):
    KPW = 512 // NW
    NL = KPW // 4
    NT = NL // 4
    pol = " nt" if nt else ""
    o = []
    A = o.append
    A(HEADER.rstrip())
    lds_o = 256
    lds_bytes = lds_o + NW * 512
    A(f"; @launch grid=(256,1,1) block=({(NW+1)*64},1,1) lds={lds_bytes}")
    A('.amdgcn_target "amdgcn-amd-amdhsa--gfx950"')
    A(".text")
    A(f".globl {NAME}_kernel")
    A(".p2align 8")
    A(f".type {NAME}_kernel,@function")
    A(f"{NAME}_kernel:")
    vQ = 4
    vSel = 8
    vMask = 12
    vM = 13; vT = 14; vL = 15
    vAcc = 16
    vS = 20
    vK = 20 + NL
    vK = (vK + 3) // 4 * 4
    vV = vK + 4 * NL
    vEnd = vV + 4 * NL
    A("    s_load_dwordx2 s[24:25], s[0:1], 8        ; K")
    A("    s_load_dwordx2 s[28:29], s[0:1], 16       ; V")
    A("    s_load_dwordx2 s[32:33], s[0:1], 0        ; q")
    if stamps:
        A("    s_load_dwordx2 s[60:61], s[0:1], 64")
        A("    s_memrealtime s[64:65]")
    A("    s_cmp_ge_u32 s2, 256")
    A("    s_cbranch_scc1 L_end")
    A("    v_lshrrev_b32 v1, 6, v0")
    A("    v_and_b32 v0, 63, v0                      ; lane")
    A("    v_readfirstlane_b32 s3, v1")
    A("    s_and_b32 s22, s2, 7")
    A("    s_lshl_b32 s22, s22, 2")
    A("    s_bfe_u32 s23, s2, 0x20003")
    A("    s_or_b32 s22, s22, s23                    ; head")
    A("    s_lshr_b32 s23, s2, 5                     ; split")
    A("    s_mov_b32 s26, 0x2000000")
    A("    s_mov_b32 s27, 0x20000")
    A("    s_mov_b32 s30, 0x2000000")
    A("    s_mov_b32 s31, 0x20000")
    A("    s_mov_b32 s34, 8192")
    A("    s_mov_b32 s35, 0x20000")
    A(f"    s_cmp_eq_u32 s3, {NW}")
    A("    s_cbranch_scc1 L_helper")
    A("    s_lshl_b32 s4, s22, 20")
    A("    s_lshl_b32 s5, s23, 17")
    A("    s_add_u32 s4, s4, s5")
    A(f"    s_mul_i32 s5, s3, {KPW*256}")
    A("    s_add_u32 s4, s4, s5")
    A("    v_lshl_add_u32 v1, v0, 4, s4")
    A("    v_and_b32 v2, 15, v0")
    A("    s_lshl_b32 s5, s22, 8")
    A("    v_lshl_add_u32 v2, v2, 4, s5")
    for i in range(1, NT):
        A(f"    s_mov_b32 s{35+i}, {4096*i}")
    A("    s_waitcnt lgkmcnt(0)")
    A(f"    buffer_load_dwordx4 v[{vQ}:{vQ+3}], v2, s[32:35], 0 offen")
    def soff(i):
        return "0" if i == 0 else f"s{35+i}"
    for t in range(NL):
        off = f" offset:{(t%4)*1024}" if t % 4 else ""
        A(f"    buffer_load_dwordx4 v[{vK+4*t}:{vK+4*t+3}], v1, s[24:27], {soff(t//4)} offen{off}{pol}")
    for t in range(NL):
        off = f" offset:{(t%4)*1024}" if t % 4 else ""
        A(f"    buffer_load_dwordx4 v[{vV+4*t}:{vV+4*t+3}], v1, s[28:31], {soff(t//4)} offen{off}{pol}")
    if stamps:
        A("    s_memrealtime s[66:67]")
    A("    v_and_b32 v3, 1, v0")
    A("    v_mov_b32 v2, 0x0c0c0302")
    A(f"    v_mov_b32 v{vT}, 0x03020c0c")
    A("    v_cmp_eq_u32 vcc, 1, v3")
    A("    v_bfe_u32 v3, v0, 1, 2")
    A(f"    v_mov_b32 v{vM}, 0x0c0c0c0c")
    A(f"    v_cndmask_b32 v2, v2, v{vT}, vcc")
    for r in range(4):
        A(f"    v_cmp_eq_u32 vcc, {r}, v3")
        A("    s_nop 1")
        A(f"    v_cndmask_b32 v{vSel+r}, v{vM}, v2, vcc")
    A("    v_and_b32 v3, 8, v0")
    A("    v_cmp_eq_u32 vcc, 8, v3")
    A("    v_mov_b32 v2, 0xffff0000")
    A(f"    s_mov_b32 s8, 0x{f2u(C_SCALE):08x}")
    A(f"    v_cndmask_b32 v{vMask}, 0, v2, vcc")
    A(f"    s_lshl_b32 s4, s3, 9")
    A(f"    s_add_u32 s4, s4, {lds_o}")
    A("    v_lshl_add_u32 v2, v0, 3, s4")
    A("    s_lshl_b32 s4, s3, 3")
    A("    v_mov_b32 v3, s4")
    total = 1 + 2 * NL
    for i in range(NT):
        A(f"    s_waitcnt vmcnt({total - 1 - (4*i+4)})")
        for c in range(4):
            for t in range(4):
                k = vK + 16*i + 4*t + c
                s = vS + 4*i + t
                if c == 0:
                    A(f"    v_dot2_f32_bf16 v{s}, v{k}, v{vQ}, 0")
                else:
                    A(f"    v_dot2c_f32_bf16 v{s}, v{k}, v{vQ+c}")
        for step in (8, 4, 2, 1):
            for t in range(4):
                s = vS + 4*i + t
                A(f"    v_add_f32_dpp v{s}, v{s}, v{s} row_ror:{step} row_mask:0xf bank_mask:0xf")
    if stamps:
        A("    s_memrealtime s[68:69]")
    A(f"    v_max3_f32 v{vM}, v{vS}, v{vS+1}, v{vS+2}")
    i = 3
    while i < NL:
        if i + 1 < NL:
            A(f"    v_max3_f32 v{vM}, v{vM}, v{vS+i}, v{vS+i+1}")
            i += 2
        else:
            A(f"    v_max_f32 v{vM}, v{vM}, v{vS+i}")
            i += 1
    for sw in ("16", "32"):
        A(f"    v_mov_b32 v{vT}, v{vM}")
        A("    s_nop 1")
        A(f"    v_permlane{sw}_swap_b32 v{vM}, v{vT}")
        A("    s_nop 0")
        A(f"    v_max_f32 v{vM}, v{vM}, v{vT}")
    A(f"    v_mul_f32 v{vM}, s8, v{vM}")
    for k in range(NL):
        A(f"    v_fma_f32 v{vS+k}, v{vS+k}, s8, -v{vM}")
    for k in range(NL):
        A(f"    v_exp_f32 v{vS+k}, v{vS+k}")
    A("    s_nop 0")
    A(f"    v_add_f32 v{vL}, v{vS}, v{vS+1}")
    for k in range(2, NL):
        A(f"    v_add_f32 v{vL}, v{vL}, v{vS+k}")
    for k in range(NL):
        A(f"    v_and_b32 v{vT}, v{vS+k}, v{vMask}")
        A(f"    v_sub_f32 v{vS+k}, v{vS+k}, v{vT}")
        for r in range(4):
            A(f"    v_perm_b32 v{vK+4*k+r}, v{vS+k}, v{vS+k}, v{vSel+r}")
    for sw in ("16", "32"):
        A(f"    v_mov_b32 v{vT}, v{vL}")
        A("    s_nop 1")
        A(f"    v_permlane{sw}_swap_b32 v{vL}, v{vT}")
        A("    s_nop 0")
        A(f"    v_add_f32 v{vL}, v{vL}, v{vT}")
    A(f"    v_mov_b32 v{vT}, v{vM}")
    A("    s_mov_b64 exec, 1")
    A(f"    ds_write_b64 v3, v[{vT}:{vL}]")
    A("    s_mov_b64 exec, -1")
    A("    s_waitcnt lgkmcnt(0)")
    A("    s_barrier")
    if stamps:
        A("    s_memrealtime s[70:71]")
    for t in range(NL):
        A(f"    s_waitcnt vmcnt({NL-1-t})")
        c = "0" if t == 0 else f"v[{vAcc}:{vAcc+3}]"
        A(f"    v_mfma_f32_16x16x32_bf16 v[{vAcc}:{vAcc+3}], v[{vK+4*t}:{vK+4*t+3}], v[{vV+4*t}:{vV+4*t+3}], {c}")
    if stamps:
        A("    s_memrealtime s[72:73]")
    A("    s_nop 7")
    A(f"    v_permlane32_swap_b32 v{vAcc}, v{vAcc+2}")
    A(f"    v_permlane32_swap_b32 v{vAcc+1}, v{vAcc+3}")
    A("    s_nop 0")
    A(f"    v_add_f32 v{vAcc}, v{vAcc}, v{vAcc+2}")
    A(f"    v_add_f32 v{vAcc+1}, v{vAcc+1}, v{vAcc+3}")
    A(f"    ds_write_b64 v2, v[{vAcc}:{vAcc+1}]")
    A("    s_waitcnt lgkmcnt(0)")
    A("    s_barrier")
    if stamps:
        emit_stamps(A, NW, 5)
    A("    s_endpgm")

    A("L_helper:")
    A("    s_load_dwordx2 s[40:41], s[0:1], 64       ; ws")
    A("    s_load_dwordx2 s[44:45], s[0:1], 56       ; dbg")
    A("    s_load_dwordx2 s[48:49], s[0:1], 48       ; out")
    A("    s_load_dwordx2 s[52:53], s[0:1], 24       ; k_tree")
    A("    s_load_dwordx2 s[56:57], s[0:1], 32       ; v_tree")
    A("    s_load_dwordx2 s[88:89], s[0:1], 40       ; mask")
    A("    s_mov_b32 s42, 0x40000")
    A("    s_mov_b32 s43, 0x20000")
    A("    s_mov_b32 s46, 256")
    A("    s_mov_b32 s47, 0x20000")
    A("    s_mov_b32 s50, 8192")
    A("    s_mov_b32 s51, 0x20000")
    A("    s_mov_b32 s54, 8192")
    A("    s_mov_b32 s55, 0x20000")
    A("    s_mov_b32 s58, 8192")
    A("    s_mov_b32 s59, 0x20000")
    A("    s_lshl_b32 s4, s22, 13")
    A("    s_lshl_b32 s5, s23, 10")
    A("    s_add_u32 s5, s5, s4")
    A("    v_lshlrev_b32 v1, 3, v0                   ; lane*8")
    A("    v_add_u32 v2, s5, v1")
    A("    v_mov_b32 v4, -1")
    A("    v_mov_b32 v5, -1")
    A("    s_lshl_b32 s6, s22, 3")
    A("    v_mov_b32 v3, s6")
    A("    v_mov_b32 v6, 1")
    A("    v_and_b32 v7, 15, v0")
    A("    v_lshlrev_b32 v7, 2, v7")
    A("    v_bfe_u32 v8, v0, 4, 1")
    A("    v_lshl_add_u32 v7, v8, 1, v7")
    A("    v_lshrrev_b32 v8, 5, v0")
    A("    v_add_u32 v7, v7, v8")
    A("    s_lshl_b32 s6, s22, 8")
    A("    v_lshl_add_u32 v7, v7, 2, s6")
    A("    v_mov_b32 v8, 0")
    A("    s_waitcnt lgkmcnt(0)")
    A("    buffer_store_dwordx2 v[4:5], v2, s[40:43], 0 offen sc1")
    A("    buffer_store_dwordx2 v[4:5], v2, s[40:43], 0 offen offset:512 sc1")
    A("    s_waitcnt vmcnt(0)")
    A("    s_mov_b64 exec, 1")
    A("    buffer_atomic_add v6, v3, s[44:47], 0 offen sc1")
    A("    s_mov_b64 exec, -1")
    A(f"    s_cmp_lg_u32 s23, {cons}")
    A("    s_cbranch_scc1 L_h1")
    A("    buffer_load_dword v10, v7, s[32:35], 0 offen   ; q pair")
    A("    buffer_load_dword v11, v7, s[52:55], 0 offen")
    A("    buffer_load_dword v12, v7, s[56:59], 0 offen")
    A("    global_load_ushort v13, v8, s[88:89]       ; mask")
    A("    s_waitcnt vmcnt(0)")
    A("    v_dot2_f32_bf16 v10, v10, v11, 0")
    A("    v_lshlrev_b32 v13, 16, v13                ; mask f32")
    A("    v_sub_f32 v13, 1.0, v13")
    A("    s_nop 1")
    for step in (8, 4, 2, 1):
        A(f"    v_add_f32_dpp v10, v10, v10 row_ror:{step} row_mask:0xf bank_mask:0xf")
        A("    s_nop 1")
    for sw in ("16", "32"):
        A("    v_mov_b32 v11, v10")
        A("    s_nop 1")
        A(f"    v_permlane{sw}_swap_b32 v10, v11")
        A("    s_nop 0")
        A("    v_add_f32 v10, v10, v11")
    A(f"    v_mul_f32 v10, 0x{f2u(C_SCALE):08x}, v10")
    A(f"    v_mul_f32 v13, 0x{f2u(-1e9*LOG2E):08x}, v13")
    A("    v_add_f32 v10, v10, v13")
    A("    v_lshlrev_b32 v11, 16, v12")
    A("    v_and_b32 v12, 0xffff0000, v12")
    A("    s_mov_b32 s92, 0x40000")
    A("L_poll_ann:")
    A("    buffer_load_dword v14, v3, s[44:47], 0 offen sc1")
    A("    s_waitcnt vmcnt(0)")
    A("    v_readfirstlane_b32 s6, v14")
    A("    s_cmp_ge_u32 s6, 8")
    A("    s_cbranch_scc1 L_h1")
    A("    s_sleep 2")
    A("    s_sub_u32 s92, s92, 1")
    A("    s_cbranch_scc0 L_poll_ann")
    A("L_h1:")
    A(f"    v_and_b32 v14, {NW-1}, v0")
    A("    v_lshlrev_b32 v14, 3, v14")
    A("    s_barrier")
    A("    ds_read_b64 v[16:17], v14                 ; (m_w, l_w)")
    A("    s_waitcnt lgkmcnt(0)")
    A("    v_mov_b32 v18, v16")
    steps = [s for s in (8, 4, 2, 1) if s < NW]
    for step in steps:
        A("    s_nop 1")
        A(f"    v_max_f32_dpp v18, v18, v18 row_ror:{step} row_mask:0xf bank_mask:0xf")
    A("    v_sub_f32 v16, v16, v18")
    A("    v_exp_f32 v16, v16                        ; f_w")
    A("    s_nop 0")
    A("    v_mul_f32 v19, v16, v17")
    for step in steps:
        A("    s_nop 1")
        A(f"    v_add_f32_dpp v19, v19, v19 row_ror:{step} row_mask:0xf bank_mask:0xf")
    A("    v_min_u32 v20, -2, v18")
    A("    v_min_u32 v21, -2, v19")
    A("    v_mov_b32 v15, s5")
    A("    s_mov_b64 exec, 1")
    A("    buffer_store_dwordx2 v[20:21], v15, s[40:43], 0 offen offset:512 sc1")
    A("    s_mov_b64 exec, -1")
    A(f"    s_cmp_lg_u32 s23, {cons}")
    A("    s_cbranch_scc1 L_h2")
    A("    v_and_b32 v15, 7, v0")
    A("    v_lshl_add_u32 v15, v15, 10, s4")
    A("    s_mov_b32 s92, 0x40000")
    A("L_poll_ml:")
    A("    buffer_load_dwordx2 v[22:23], v15, s[40:43], 0 offen offset:512 sc1")
    A("    s_waitcnt vmcnt(0)")
    A("    v_max_u32 v24, v22, v23")
    A("    v_cmp_eq_u32 vcc, -1, v24")
    A("    s_cbranch_vccz L_ml_ok")
    A("    s_sleep 2")
    A("    s_sub_u32 s92, s92, 1")
    A("    s_cbranch_scc0 L_poll_ml")
    A("L_ml_ok:")
    A("    v_max_f32 v24, v22, v10")
    for step in (4, 2, 1):
        A("    s_nop 1")
        A(f"    v_max_f32_dpp v24, v24, v24 row_ror:{step} row_mask:0xf bank_mask:0xf")
    A("    v_sub_f32 v22, v22, v24")
    A("    v_sub_f32 v10, v10, v24")
    A("    v_exp_f32 v22, v22                        ; w_s")
    A("    v_exp_f32 v10, v10                        ; w_tree")
    A("    s_nop 0")
    A("    v_mul_f32 v23, v22, v23")
    for step in (4, 2, 1):
        A("    s_nop 1")
        A(f"    v_add_f32_dpp v23, v23, v23 row_ror:{step} row_mask:0xf bank_mask:0xf")
    A("    v_add_f32 v23, v23, v10                   ; L")
    A("    v_rcp_f32 v23, v23")
    A("    s_nop 0")
    A("    v_mul_f32 v22, v22, v23                   ; W_s")
    A("    v_mul_f32 v10, v10, v23                   ; W_tree")
    A("    v_mul_f32 v11, v11, v10")
    A("    v_mul_f32 v12, v12, v10")
    for s in range(8):
        A(f"    v_readlane_b32 s{80+s}, v22, {s}")
    A("    s_nop 1")
    A(f"    v_mul_f32 v16, s{80+cons}, v16")
    A("    v_add_u32 v15, s4, v1")
    A("L_h2:")
    A("    s_nop 1")
    for w in range(NW):
        A(f"    v_readlane_b32 s{8+w}, v16, {w}")
    A(f"    v_add_u32 v14, {lds_o}, v1")
    A("    s_barrier")
    for w in range(NW):
        A(f"    ds_read_b64 v[{32+2*w}:{33+2*w}], v14 offset:{512*w}")
    for w in range(NW):
        A(f"    s_waitcnt lgkmcnt({NW-1-w})")
        if w == 0:
            A(f"    v_mul_f32 v20, s8, v32")
            A(f"    v_mul_f32 v21, s8, v33")
        else:
            A(f"    v_fmac_f32 v20, s{8+w}, v{32+2*w}")
            A(f"    v_fmac_f32 v21, s{8+w}, v{33+2*w}")
    A(f"    s_cmp_eq_u32 s23, {cons}")
    A("    s_cbranch_scc1 L_final")
    A("    v_min_u32 v20, -2, v20")
    A("    v_min_u32 v21, -2, v21")
    A("    buffer_store_dwordx2 v[20:21], v2, s[40:43], 0 offen sc1")
    if stamps:
        A("    s_memrealtime s[66:67]")
        A("    s_mov_b64 s[68:69], 0")
        A("    s_mov_b64 s[70:71], 0")
        A("    s_mov_b64 s[72:73], 0")
        emit_stamps(A, NW, 5)
    A("    s_endpgm")
    A("L_final:")
    A("    v_add_f32 v11, v11, v20")
    A("    v_add_f32 v12, v12, v21")
    if stamps:
        A("    s_memrealtime s[66:67]")
    others = [s for s in range(8) if s != cons]
    A("    s_mov_b32 s92, 0x40000")
    A("L_poll_o:")
    for j, s in enumerate(others):
        off = 1024 * s
        so = "0"
        if off >= 4096:
            so = "s7"; off -= 4096
        if j == 0:
            A("    s_movk_i32 s7, 4096")
        A(f"    buffer_load_dwordx2 v[{32+2*j}:{33+2*j}], v15, s[40:43], {so} offen offset:{off} sc1")
    A("    s_waitcnt vmcnt(0)")
    A("    v_max3_u32 v24, v32, v33, v34")
    for j in range(3, 13, 2):
        A(f"    v_max3_u32 v24, v24, v{32+j}, v{33+j}")
    A("    v_max_u32 v24, v24, v45")
    A("    v_cmp_eq_u32 vcc, -1, v24")
    A("    s_cbranch_vccz L_o_ok")
    A("    s_sub_u32 s92, s92, 1")
    A("    s_cbranch_scc0 L_poll_o")
    A("L_o_ok:")
    for j, s in enumerate(others):
        A(f"    v_fmac_f32 v11, s{80+s}, v{32+2*j}")
        A(f"    v_fmac_f32 v12, s{80+s}, v{33+2*j}")
    A("    v_cvt_pk_bf16_f32 v11, v11, v12")
    A("    buffer_store_dword v11, v7, s[48:51], 0 offen")
    if stamps:
        A("    s_memrealtime s[68:69]")
        A("    s_mov_b64 s[70:71], 0")
        A("    s_mov_b64 s[72:73], 0")
        emit_stamps(A, NW, 5)
    A("L_end:")
    A("    s_endpgm")
    nv = max(vEnd, 48)
    A('.section .rodata,"a"')
    A(".p2align 6")
    A(f".amdhsa_kernel {NAME}_kernel")
    A(f"  .amdhsa_next_free_vgpr {nv}")
    A("  .amdhsa_next_free_sgpr 96")
    A(f"  .amdhsa_accum_offset {(nv+3)//4*4}")
    A("  .amdhsa_group_segment_fixed_size 0")
    A("  .amdhsa_kernarg_size 72")
    A("  .amdhsa_user_sgpr_count 2")
    A("  .amdhsa_user_sgpr_kernarg_segment_ptr 1")
    A("  .amdhsa_system_sgpr_workgroup_id_x 1")
    A(".end_amdhsa_kernel")
    return "\n".join(o) + "\n"


def emit_stamps(A, NW, n):
    A("    s_memrealtime s[74:75]")
    A("    s_waitcnt lgkmcnt(0)")
    A(f"    s_mul_i32 s4, s2, {NW+1}")
    A("    s_add_u32 s4, s4, s3")
    A("    s_lshl_b32 s4, s4, 6")
    A("    s_add_u32 s4, s4, 0x100000")
    A("    v_mov_b32 v0, s4")
    A("    s_getreg_b32 s5, hwreg(HW_REG_XCC_ID)")
    A("    s_getreg_b32 s6, hwreg(HW_REG_HW_ID)")
    for i in range(6):
        A(f"    v_mov_b32 v{4+i}, s{64+2*i}")
    A("    v_mov_b32 v10, s5")
    A("    v_mov_b32 v11, s6")
    A("    s_mov_b64 exec, 1")
    A("    global_store_dwordx4 v0, v[4:7], s[60:61]")
    A("    global_store_dwordx4 v0, v[8:11], s[60:61] offset:16")


if __name__ == "__main__":
    ap = argparse.ArgumentParser()
    ap.add_argument("--nw", type=int, default=8)
    ap.add_argument("--no-nt", action="store_true")
    ap.add_argument("--stamps", action="store_true")
    ap.add_argument("--cons", type=int, default=7)
    ap.add_argument("-o", default="-")
    a = ap.parse_args()
    s = gen(NW=a.nw, nt=not a.no_nt, stamps=a.stamps, cons=a.cons)
    if a.o == "-":
        sys.stdout.write(s)
    else:
        open(a.o, "w").write(s)
```

```python
import sys, argparse

NAME = "standalone__tree_speculative_verify_tree_attention_over_candidate_token_tree__decode"

HEADER = """; Kernarg layout for this problem (72 bytes, ptrs only, base s[0:1]):
"""

import struct
def f2u(x):
    return struct.unpack("<I", struct.pack("<f", x))[0]

C_SCALE = (128 ** -0.5) * 1.4426950408889634
LOG2E = 1.4426950408889634


def gen(NW=8, nt=True, stamps=False, cons=7):
    KPW = 512 // NW
    NL = KPW // 4
    NT = NL // 4
    pol = " nt" if nt else ""
    o = []
    A = o.append
    A(HEADER.rstrip())
    lds_o = 256
    lds_bytes = lds_o + NW * 512
    A(f"; @launch grid=(256,1,1) block=({(NW+1)*64},1,1) lds={lds_bytes}")
    A('.amdgcn_target "amdgcn-amd-amdhsa--gfx950"')
    A(".text")
    A(f".globl {NAME}_kernel")
    A(".p2align 8")
    A(f".type {NAME}_kernel,@function")
    A(f"{NAME}_kernel:")
    vQ = 4
    vSel = 8
    vMask = 12
    vM = 13; vT = 14; vL = 15
    vAcc = 16
    vS = 20
    vK = 20 + NL
    vK = (vK + 3) // 4 * 4
    vV = vK + 4 * NL
    vEnd = vV + 4 * NL
    A("    s_load_dwordx2 s[24:25], s[0:1], 8        ; K")
    A("    s_load_dwordx2 s[28:29], s[0:1], 16       ; V")
    A("    s_load_dwordx2 s[32:33], s[0:1], 0        ; q")
    if stamps:
        A("    s_load_dwordx2 s[60:61], s[0:1], 64")
        A("    s_memrealtime s[64:65]")
    A("    s_cmp_ge_u32 s2, 256")
    A("    s_cbranch_scc1 L_end")
    A("    v_lshrrev_b32 v1, 6, v0")
    A("    v_and_b32 v0, 63, v0                      ; lane")
    A("    v_readfirstlane_b32 s3, v1")
    A("    s_and_b32 s22, s2, 7")
    A("    s_lshl_b32 s22, s22, 2")
    A("    s_bfe_u32 s23, s2, 0x20003")
    A("    s_or_b32 s22, s22, s23                    ; head")
    A("    s_lshr_b32 s23, s2, 5                     ; split")
    A("    s_mov_b32 s26, 0x2000000")
    A("    s_mov_b32 s27, 0x20000")
    A("    s_mov_b32 s30, 0x2000000")
    A("    s_mov_b32 s31, 0x20000")
    A("    s_mov_b32 s34, 8192")
    A("    s_mov_b32 s35, 0x20000")
    A(f"    s_cmp_eq_u32 s3, {NW}")
    A("    s_cbranch_scc1 L_helper")
    A("    s_lshl_b32 s4, s22, 20")
    A("    s_lshl_b32 s5, s23, 17")
    A("    s_add_u32 s4, s4, s5")
    A(f"    s_mul_i32 s5, s3, {KPW*256}")
    A("    s_add_u32 s4, s4, s5")
    A("    v_lshl_add_u32 v1, v0, 4, s4")
    A("    v_and_b32 v2, 15, v0")
    A("    s_lshl_b32 s5, s22, 8")
    A("    v_lshl_add_u32 v2, v2, 4, s5")
    for i in range(1, NT):
        A(f"    s_mov_b32 s{35+i}, {4096*i}")
    A("    s_waitcnt lgkmcnt(0)")
    A(f"    buffer_load_dwordx4 v[{vQ}:{vQ+3}], v2, s[32:35], 0 offen")
    def soff(i):
        return "0" if i == 0 else f"s{35+i}"
    for t in range(NL):
        off = f" offset:{(t%4)*1024}" if t % 4 else ""
        A(f"    buffer_load_dwordx4 v[{vK+4*t}:{vK+4*t+3}], v1, s[24:27], {soff(t//4)} offen{off}{pol}")
    for t in range(NL):
        off = f" offset:{(t%4)*1024}" if t % 4 else ""
        A(f"    buffer_load_dwordx4 v[{vV+4*t}:{vV+4*t+3}], v1, s[28:31], {soff(t//4)} offen{off}{pol}")
    if stamps:
        A("    s_memrealtime s[66:67]")
    A("    v_and_b32 v3, 1, v0")
    A("    v_mov_b32 v2, 0x0c0c0302")
    A(f"    v_mov_b32 v{vT}, 0x03020c0c")
    A("    v_cmp_eq_u32 vcc, 1, v3")
    A("    v_bfe_u32 v3, v0, 1, 2")
    A(f"    v_mov_b32 v{vM}, 0x0c0c0c0c")
    A(f"    v_cndmask_b32 v2, v2, v{vT}, vcc")
    for r in range(4):
        A(f"    v_cmp_eq_u32 vcc, {r}, v3")
        A("    s_nop 1")
        A(f"    v_cndmask_b32 v{vSel+r}, v{vM}, v2, vcc")
    A("    v_and_b32 v3, 8, v0")
    A("    v_cmp_eq_u32 vcc, 8, v3")
    A("    v_mov_b32 v2, 0xffff0000")
    A(f"    s_mov_b32 s8, 0x{f2u(C_SCALE):08x}")
    A(f"    v_cndmask_b32 v{vMask}, 0, v2, vcc")
    A(f"    s_lshl_b32 s4, s3, 9")
    A(f"    s_add_u32 s4, s4, {lds_o}")
    A("    v_lshl_add_u32 v2, v0, 3, s4")
    A("    s_lshl_b32 s4, s3, 3")
    A("    v_mov_b32 v3, s4")
    total = 1 + 2 * NL
    for i in range(NT):
        A(f"    s_waitcnt vmcnt({total - 1 - (4*i+4)})")
        for c in range(4):
            for t in range(4):
                k = vK + 16*i + 4*t + c
                s = vS + 4*i + t
                if c == 0:
                    A(f"    v_dot2_f32_bf16 v{s}, v{k}, v{vQ}, 0")
                else:
                    A(f"    v_dot2c_f32_bf16 v{s}, v{k}, v{vQ+c}")
        for step in (8, 4, 2, 1):
            for t in range(4):
                s = vS + 4*i + t
                A(f"    v_add_f32_dpp v{s}, v{s}, v{s} row_ror:{step} row_mask:0xf bank_mask:0xf")
    if stamps:
        A("    s_memrealtime s[68:69]")
    A(f"    v_max3_f32 v{vM}, v{vS}, v{vS+1}, v{vS+2}")
    i = 3
    while i < NL:
        if i + 1 < NL:
            A(f"    v_max3_f32 v{vM}, v{vM}, v{vS+i}, v{vS+i+1}")
            i += 2
        else:
            A(f"    v_max_f32 v{vM}, v{vM}, v{vS+i}")
            i += 1
    for sw in ("16", "32"):
        A(f"    v_mov_b32 v{vT}, v{vM}")
        A("    s_nop 1")
        A(f"    v_permlane{sw}_swap_b32 v{vM}, v{vT}")
        A("    s_nop 0")
        A(f"    v_max_f32 v{vM}, v{vM}, v{vT}")
    A(f"    v_mul_f32 v{vM}, s8, v{vM}")
    for k in range(NL):
        A(f"    v_fma_f32 v{vS+k}, v{vS+k}, s8, -v{vM}")
    for k in range(NL):
        A(f"    v_exp_f32 v{vS+k}, v{vS+k}")
    A("    s_nop 0")
    A(f"    v_add_f32 v{vL}, v{vS}, v{vS+1}")
    for k in range(2, NL):
        A(f"    v_add_f32 v{vL}, v{vL}, v{vS+k}")
    for k in range(NL):
        A(f"    v_and_b32 v{vT}, v{vS+k}, v{vMask}")
        A(f"    v_sub_f32 v{vS+k}, v{vS+k}, v{vT}")
        for r in range(4):
            A(f"    v_perm_b32 v{vK+4*k+r}, v{vS+k}, v{vS+k}, v{vSel+r}")
    for sw in ("16", "32"):
        A(f"    v_mov_b32 v{vT}, v{vL}")
        A("    s_nop 1")
        A(f"    v_permlane{sw}_swap_b32 v{vL}, v{vT}")
        A("    s_nop 0")
        A(f"    v_add_f32 v{vL}, v{vL}, v{vT}")
    A(f"    v_mov_b32 v{vT}, v{vM}")
    A("    s_mov_b64 exec, 1")
    A(f"    ds_write_b64 v3, v[{vT}:{vL}]")
    A("    s_mov_b64 exec, -1")
    A("    s_waitcnt lgkmcnt(0)")
    A("    s_barrier")
    if stamps:
        A("    s_memrealtime s[70:71]")
    for t in range(NL):
        A(f"    s_waitcnt vmcnt({NL-1-t})")
        c = "0" if t == 0 else f"v[{vAcc}:{vAcc+3}]"
        A(f"    v_mfma_f32_16x16x32_bf16 v[{vAcc}:{vAcc+3}], v[{vK+4*t}:{vK+4*t+3}], v[{vV+4*t}:{vV+4*t+3}], {c}")
    if stamps:
        A("    s_memrealtime s[72:73]")
    A("    s_nop 7")
    A(f"    v_permlane32_swap_b32 v{vAcc}, v{vAcc+2}")
    A(f"    v_permlane32_swap_b32 v{vAcc+1}, v{vAcc+3}")
    A("    s_nop 0")
    A(f"    v_add_f32 v{vAcc}, v{vAcc}, v{vAcc+2}")
    A(f"    v_add_f32 v{vAcc+1}, v{vAcc+1}, v{vAcc+3}")
    A(f"    ds_write_b64 v2, v[{vAcc}:{vAcc+1}]")
    A("    s_waitcnt lgkmcnt(0)")
    A("    s_barrier")
    if stamps:
        emit_stamps(A, NW, 5)
    A("    s_endpgm")

    A("L_helper:")
    A("    s_load_dwordx2 s[40:41], s[0:1], 64       ; ws")
    A("    s_load_dwordx2 s[44:45], s[0:1], 56       ; dbg")
    A("    s_load_dwordx2 s[48:49], s[0:1], 48       ; out")
    A("    s_load_dwordx2 s[52:53], s[0:1], 24       ; k_tree")
    A("    s_load_dwordx2 s[56:57], s[0:1], 32       ; v_tree")
    A("    s_load_dwordx2 s[88:89], s[0:1], 40       ; mask")
    A("    s_mov_b32 s42, 0x40000")
    A("    s_mov_b32 s43, 0x20000")
    A("    s_mov_b32 s46, 256")
    A("    s_mov_b32 s47, 0x20000")
    A("    s_mov_b32 s50, 8192")
    A("    s_mov_b32 s51, 0x20000")
    A("    s_mov_b32 s54, 8192")
    A("    s_mov_b32 s55, 0x20000")
    A("    s_mov_b32 s58, 8192")
    A("    s_mov_b32 s59, 0x20000")
    A("    s_lshl_b32 s4, s22, 13")
    A("    s_lshl_b32 s5, s23, 10")
    A("    s_add_u32 s5, s5, s4")
    A("    v_lshlrev_b32 v1, 3, v0                   ; lane*8")
    A("    v_add_u32 v2, s5, v1")
    A("    v_mov_b32 v4, -1")
    A("    v_mov_b32 v5, -1")
    A("    s_lshl_b32 s6, s22, 2")
    A("    s_add_u32 s6, s6, 128")
    A("    v_mov_b32 v3, s6")
    A("    v_mov_b32 v6, 1")
    A("    v_and_b32 v7, 15, v0")
    A("    v_lshlrev_b32 v7, 2, v7")
    A("    v_bfe_u32 v8, v0, 4, 1")
    A("    v_lshl_add_u32 v7, v8, 1, v7")
    A("    v_lshrrev_b32 v8, 5, v0")
    A("    v_add_u32 v7, v7, v8")
    A("    s_lshl_b32 s6, s22, 8")
    A("    v_lshl_add_u32 v7, v7, 2, s6")
    A("    v_mov_b32 v8, 0")
    A("    s_waitcnt lgkmcnt(0)")
    A("    buffer_store_dwordx2 v[4:5], v2, s[40:43], 0 offen sc1")
    A("    buffer_store_dwordx2 v[4:5], v2, s[40:43], 0 offen offset:512 sc1")
    A("    s_waitcnt vmcnt(0)")
    A("    s_mov_b64 exec, 1")
    A("    buffer_atomic_add v6, v3, s[44:47], 0 offen sc1")
    A("    s_mov_b64 exec, -1")
    A(f"    s_cmp_lg_u32 s23, {cons}")
    A("    s_cbranch_scc1 L_h1")
    A("    buffer_load_dword v10, v7, s[32:35], 0 offen   ; q pair")
    A("    buffer_load_dword v11, v7, s[52:55], 0 offen")
    A("    buffer_load_dword v12, v7, s[56:59], 0 offen")
    A("    global_load_ushort v13, v8, s[88:89]       ; mask")
    A("    s_waitcnt vmcnt(0)")
    A("    v_dot2_f32_bf16 v10, v10, v11, 0")
    A("    v_lshlrev_b32 v13, 16, v13                ; mask f32")
    A("    v_sub_f32 v13, 1.0, v13")
    A("    s_nop 1")
    for step in (8, 4, 2, 1):
        A(f"    v_add_f32_dpp v10, v10, v10 row_ror:{step} row_mask:0xf bank_mask:0xf")
        A("    s_nop 1")
    for sw in ("16", "32"):
        A("    v_mov_b32 v11, v10")
        A("    s_nop 1")
        A(f"    v_permlane{sw}_swap_b32 v10, v11")
        A("    s_nop 0")
        A("    v_add_f32 v10, v10, v11")
    A(f"    v_mul_f32 v10, 0x{f2u(C_SCALE):08x}, v10")
    A(f"    v_mul_f32 v13, 0x{f2u(-1e9*LOG2E):08x}, v13")
    A("    v_add_f32 v10, v10, v13")
    A("    v_lshlrev_b32 v11, 16, v12")
    A("    v_and_b32 v12, 0xffff0000, v12")
    A("    s_mov_b32 s92, 0x40000")
    A("L_poll_ann:")
    A("    buffer_load_dword v14, v3, s[44:47], 0 offen sc1")
    A("    s_waitcnt vmcnt(0)")
    A("    v_readfirstlane_b32 s6, v14")
    A("    s_cmp_ge_u32 s6, 8")
    A("    s_cbranch_scc1 L_h1")
    A("    s_sleep 2")
    A("    s_sub_u32 s92, s92, 1")
    A("    s_cbranch_scc0 L_poll_ann")
    A("L_h1:")
    A(f"    v_and_b32 v14, {NW-1}, v0")
    A("    v_lshlrev_b32 v14, 3, v14")
    A("    s_barrier")
    A("    ds_read_b64 v[16:17], v14                 ; (m_w, l_w)")
    A("    s_waitcnt lgkmcnt(0)")
    A("    v_mov_b32 v18, v16")
    steps = [s for s in (8, 4, 2, 1) if s < NW]
    for step in steps:
        A("    s_nop 1")
        A(f"    v_max_f32_dpp v18, v18, v18 row_ror:{step} row_mask:0xf bank_mask:0xf")
    A("    v_sub_f32 v16, v16, v18")
    A("    v_exp_f32 v16, v16                        ; f_w")
    A("    s_nop 0")
    A("    v_mul_f32 v19, v16, v17")
    for step in steps:
        A("    s_nop 1")
        A(f"    v_add_f32_dpp v19, v19, v19 row_ror:{step} row_mask:0xf bank_mask:0xf")
    A("    v_min_u32 v20, -2, v18")
    A("    v_min_u32 v21, -2, v19")
    A("    v_mov_b32 v15, s5")
    A("    s_mov_b64 exec, 1")
    A("    buffer_store_dwordx2 v[20:21], v15, s[40:43], 0 offen offset:512 sc1")
    A("    s_mov_b64 exec, -1")
    A(f"    s_cmp_lg_u32 s23, {cons}")
    A("    s_cbranch_scc1 L_h2")
    A("    v_and_b32 v15, 7, v0")
    A("    v_lshl_add_u32 v15, v15, 10, s4")
    A("    s_mov_b32 s92, 0x40000")
    A("L_poll_ml:")
    A("    buffer_load_dwordx2 v[22:23], v15, s[40:43], 0 offen offset:512 sc1")
    A("    s_waitcnt vmcnt(0)")
    A("    v_max_u32 v24, v22, v23")
    A("    v_cmp_eq_u32 vcc, -1, v24")
    A("    s_cbranch_vccz L_ml_ok")
    A("    s_sleep 2")
    A("    s_sub_u32 s92, s92, 1")
    A("    s_cbranch_scc0 L_poll_ml")
    A("L_ml_ok:")
    A("    v_max_f32 v24, v22, v10")
    for step in (4, 2, 1):
        A("    s_nop 1")
        A(f"    v_max_f32_dpp v24, v24, v24 row_ror:{step} row_mask:0xf bank_mask:0xf")
    A("    v_sub_f32 v22, v22, v24")
    A("    v_sub_f32 v10, v10, v24")
    A("    v_exp_f32 v22, v22                        ; w_s")
    A("    v_exp_f32 v10, v10                        ; w_tree")
    A("    s_nop 0")
    A("    v_mul_f32 v23, v22, v23")
    for step in (4, 2, 1):
        A("    s_nop 1")
        A(f"    v_add_f32_dpp v23, v23, v23 row_ror:{step} row_mask:0xf bank_mask:0xf")
    A("    v_add_f32 v23, v23, v10                   ; L")
    A("    v_rcp_f32 v23, v23")
    A("    s_nop 0")
    A("    v_mul_f32 v22, v22, v23                   ; W_s")
    A("    v_mul_f32 v10, v10, v23                   ; W_tree")
    A("    v_mul_f32 v11, v11, v10")
    A("    v_mul_f32 v12, v12, v10")
    for s in range(8):
        A(f"    v_readlane_b32 s{80+s}, v22, {s}")
    A("    s_nop 1")
    A(f"    v_mul_f32 v16, s{80+cons}, v16")
    A("    v_add_u32 v15, s4, v1")
    A("L_h2:")
    A("    s_nop 1")
    for w in range(NW):
        A(f"    v_readlane_b32 s{8+w}, v16, {w}")
    A(f"    v_add_u32 v14, {lds_o}, v1")
    A("    s_barrier")
    for w in range(NW):
        A(f"    ds_read_b64 v[{32+2*w}:{33+2*w}], v14 offset:{512*w}")
    for w in range(NW):
        A(f"    s_waitcnt lgkmcnt({NW-1-w})")
        if w == 0:
            A(f"    v_mul_f32 v20, s8, v32")
            A(f"    v_mul_f32 v21, s8, v33")
        else:
            A(f"    v_fmac_f32 v20, s{8+w}, v{32+2*w}")
            A(f"    v_fmac_f32 v21, s{8+w}, v{33+2*w}")
    A(f"    s_cmp_eq_u32 s23, {cons}")
    A("    s_cbranch_scc1 L_final")
    A("    v_min_u32 v20, -2, v20")
    A("    v_min_u32 v21, -2, v21")
    A("    buffer_store_dwordx2 v[20:21], v2, s[40:43], 0 offen sc1")
    if stamps:
        A("    s_memrealtime s[66:67]")
        A("    s_mov_b64 s[68:69], 0")
        A("    s_mov_b64 s[70:71], 0")
        A("    s_mov_b64 s[72:73], 0")
        emit_stamps(A, NW, 5)
    A("    s_endpgm")
    A("L_final:")
    A("    v_add_f32 v11, v11, v20")
    A("    v_add_f32 v12, v12, v21")
    if stamps:
        A("    s_memrealtime s[66:67]")
    others = [s for s in range(8) if s != cons]
    A("    s_mov_b32 s92, 0x40000")
    A("L_poll_o:")
    for j, s in enumerate(others):
        off = 1024 * s
        so = "0"
        if off >= 4096:
            so = "s7"; off -= 4096
        if j == 0:
            A("    s_movk_i32 s7, 4096")
        A(f"    buffer_load_dwordx2 v[{32+2*j}:{33+2*j}], v15, s[40:43], {so} offen offset:{off} sc1")
    A("    s_waitcnt vmcnt(0)")
    A("    v_max3_u32 v24, v32, v33, v34")
    for j in range(3, 13, 2):
        A(f"    v_max3_u32 v24, v24, v{32+j}, v{33+j}")
    A("    v_max_u32 v24, v24, v45")
    A("    v_cmp_eq_u32 vcc, -1, v24")
    A("    s_cbranch_vccz L_o_ok")
    A("    s_sub_u32 s92, s92, 1")
    A("    s_cbranch_scc0 L_poll_o")
    A("L_o_ok:")
    for j, s in enumerate(others):
        A(f"    v_fmac_f32 v11, s{80+s}, v{32+2*j}")
        A(f"    v_fmac_f32 v12, s{80+s}, v{33+2*j}")
    A("    v_cvt_pk_bf16_f32 v11, v11, v12")
    A("    buffer_store_dword v11, v7, s[48:51], 0 offen")
    if stamps:
        A("    s_memrealtime s[68:69]")
        A("    s_mov_b64 s[70:71], 0")
        A("    s_mov_b64 s[72:73], 0")
        emit_stamps(A, NW, 5)
    A("L_end:")
    A("    s_endpgm")
    nv = max(vEnd, 48)
    A('.section .rodata,"a"')
    A(".p2align 6")
    A(f".amdhsa_kernel {NAME}_kernel")
    A(f"  .amdhsa_next_free_vgpr {nv}")
    A("  .amdhsa_next_free_sgpr 96")
    A(f"  .amdhsa_accum_offset {(nv+3)//4*4}")
    A("  .amdhsa_group_segment_fixed_size 0")
    A("  .amdhsa_kernarg_size 72")
    A("  .amdhsa_user_sgpr_count 2")
    A("  .amdhsa_user_sgpr_kernarg_segment_ptr 1")
    A("  .amdhsa_system_sgpr_workgroup_id_x 1")
    A(".end_amdhsa_kernel")
    return "\n".join(o) + "\n"


DBGSTAMP = False
def emit_stamps(A, NW, n):
    if DBGSTAMP:
        A("    s_memrealtime s[74:75]")
        A("    s_load_dwordx2 s[60:61], s[0:1], 56")
        A("    s_waitcnt lgkmcnt(0)")
        A("    s_getreg_b32 s5, hwreg(HW_REG_XCC_ID)")
        A("    s_and_b32 s5, s5, 7")
        A("    s_lshl_b32 s5, s5, 2")
        A("    s_not_b32 s64, s64")
        A("    s_mov_b64 exec, 1")
        A("    v_mov_b32 v0, 0")
        A("    v_mov_b32 v1, s5")
        A("    v_mov_b32 v4, s64")
        A("    global_atomic_umax v0, v4, s[60:61] sc1")
        A("    global_atomic_umax v1, v4, s[60:61] offset:32 sc1")
        for i in range(1, 6):
            A(f"    v_mov_b32 v{4+i}, s{64+2*i}")
        A(f"    s_cmp_eq_u32 s3, {NW}")
        A("    s_cbranch_scc1 1f")
        for i in range(1, 6):
            A(f"    global_atomic_umax v0, v{4+i}, s[60:61] offset:{4*i} sc1")
        A("    s_branch 2f")
        A("1:")
        A(f"    global_atomic_umax v0, v5, s[60:61] offset:24 sc1")
        A(f"    global_atomic_umax v0, v9, s[60:61] offset:28 sc1")
        A("2:")
        return

    A("    s_memrealtime s[74:75]")
    A("    s_waitcnt lgkmcnt(0)")
    A(f"    s_mul_i32 s4, s2, {NW+1}")
    A("    s_add_u32 s4, s4, s3")
    A("    s_lshl_b32 s4, s4, 6")
    A("    s_add_u32 s4, s4, 0x100000")
    A("    v_mov_b32 v0, s4")
    A("    s_getreg_b32 s5, hwreg(HW_REG_XCC_ID)")
    A("    s_getreg_b32 s6, hwreg(HW_REG_HW_ID)")
    for i in range(6):
        A(f"    v_mov_b32 v{4+i}, s{64+2*i}")
    A("    v_mov_b32 v10, s5")
    A("    v_mov_b32 v11, s6")
    A("    s_mov_b64 exec, 1")
    A("    global_store_dwordx4 v0, v[4:7], s[60:61]")
    A("    global_store_dwordx4 v0, v[8:11], s[60:61] offset:16")


if __name__ == "__main__":
    ap = argparse.ArgumentParser()
    ap.add_argument("--nw", type=int, default=8)
    ap.add_argument("--no-nt", action="store_true")
    ap.add_argument("--stamps", action="store_true")
    ap.add_argument("--cons", type=int, default=7)
    ap.add_argument("-o", default="-")
    ap.add_argument("--dbgstamps", action="store_true")
    a = ap.parse_args()
    if a.dbgstamps:
        DBGSTAMP = True
        a.stamps = True
    s = gen(NW=a.nw, nt=not a.no_nt, stamps=a.stamps, cons=a.cons)
    if a.o == "-":
        sys.stdout.write(s)
    else:
        open(a.o, "w").write(s)
```

```python
import sys, argparse

NAME = "standalone__tree_speculative_verify_tree_attention_over_candidate_token_tree__decode"

HEADER = """; Kernarg layout for this problem (72 bytes, ptrs only, base s[0:1]):
"""

import struct
def f2u(x):
    return struct.unpack("<I", struct.pack("<f", x))[0]

C_SCALE = (128 ** -0.5) * 1.4426950408889634
LOG2E = 1.4426950408889634


def gen(NW=8, nt=True, stamps=False, cons=7):
    KPW = 512 // NW
    NL = KPW // 4
    NT = NL // 4
    pol = " nt" if nt else ""
    o = []
    A = o.append
    A(HEADER.rstrip())
    lds_o = 256
    lds_bytes = lds_o + NW * 512
    A(f"; @launch grid=(256,1,1) block=({(NW+1)*64},1,1) lds={lds_bytes}")
    A('.amdgcn_target "amdgcn-amd-amdhsa--gfx950"')
    A(".text")
    A(f".globl {NAME}_kernel")
    A(".p2align 8")
    A(f".type {NAME}_kernel,@function")
    A(f"{NAME}_kernel:")
    vQ = 4
    vSel = 8
    vMask = 12
    vM = 13; vT = 14; vL = 15
    vAcc = 16
    vS = 20
    vK = 20 + NL
    vK = (vK + 3) // 4 * 4
    vV = vK + 4 * NL
    vEnd = vV + 4 * NL
    A("    s_load_dwordx2 s[24:25], s[0:1], 8        ; K")
    A("    s_load_dwordx2 s[28:29], s[0:1], 16       ; V")
    A("    s_load_dwordx2 s[32:33], s[0:1], 0        ; q")
    if stamps:
        A("    s_load_dwordx2 s[60:61], s[0:1], 64")
    if stamps or AMP:
        A("    s_memrealtime s[64:65]")
    A("    s_cmp_ge_u32 s2, 256")
    A("    s_cbranch_scc1 L_end")
    A("    v_lshrrev_b32 v1, 6, v0")
    A("    v_and_b32 v0, 63, v0                      ; lane")
    A("    v_readfirstlane_b32 s3, v1")
    A("    s_and_b32 s22, s2, 7")
    A("    s_lshl_b32 s22, s22, 2")
    A("    s_bfe_u32 s23, s2, 0x20003")
    A("    s_or_b32 s22, s22, s23                    ; head")
    A("    s_lshr_b32 s23, s2, 5                     ; split")
    A("    s_mov_b32 s26, 0x2000000")
    A("    s_mov_b32 s27, 0x20000")
    A("    s_mov_b32 s30, 0x2000000")
    A("    s_mov_b32 s31, 0x20000")
    A("    s_mov_b32 s34, 8192")
    A("    s_mov_b32 s35, 0x20000")
    A(f"    s_cmp_eq_u32 s3, {NW}")
    A("    s_cbranch_scc1 L_helper")
    A("    s_lshl_b32 s4, s22, 20")
    A("    s_lshl_b32 s5, s23, 17")
    A("    s_add_u32 s4, s4, s5")
    A(f"    s_mul_i32 s5, s3, {KPW*256}")
    A("    s_add_u32 s4, s4, s5")
    A("    v_lshl_add_u32 v1, v0, 4, s4")
    A("    v_and_b32 v2, 15, v0")
    A("    s_lshl_b32 s5, s22, 8")
    A("    v_lshl_add_u32 v2, v2, 4, s5")
    for i in range(1, NT):
        A(f"    s_mov_b32 s{35+i}, {4096*i}")
    A("    s_waitcnt lgkmcnt(0)")
    A(f"    buffer_load_dwordx4 v[{vQ}:{vQ+3}], v2, s[32:35], 0 offen")
    def soff(i):
        return "0" if i == 0 else f"s{35+i}"
    for t in range(NL):
        off = f" offset:{(t%4)*1024}" if t % 4 else ""
        A(f"    buffer_load_dwordx4 v[{vK+4*t}:{vK+4*t+3}], v1, s[24:27], {soff(t//4)} offen{off}{pol}")
    for t in range(NL):
        off = f" offset:{(t%4)*1024}" if t % 4 else ""
        A(f"    buffer_load_dwordx4 v[{vV+4*t}:{vV+4*t+3}], v1, s[28:31], {soff(t//4)} offen{off}{pol}")
    if stamps:
        A("    s_memrealtime s[66:67]")
    A("    v_and_b32 v3, 1, v0")
    A("    v_mov_b32 v2, 0x0c0c0302")
    A(f"    v_mov_b32 v{vT}, 0x03020c0c")
    A("    v_cmp_eq_u32 vcc, 1, v3")
    A("    v_bfe_u32 v3, v0, 1, 2")
    A(f"    v_mov_b32 v{vM}, 0x0c0c0c0c")
    A(f"    v_cndmask_b32 v2, v2, v{vT}, vcc")
    for r in range(4):
        A(f"    v_cmp_eq_u32 vcc, {r}, v3")
        A("    s_nop 1")
        A(f"    v_cndmask_b32 v{vSel+r}, v{vM}, v2, vcc")
    A("    v_and_b32 v3, 8, v0")
    A("    v_cmp_eq_u32 vcc, 8, v3")
    A("    v_mov_b32 v2, 0xffff0000")
    A(f"    s_mov_b32 s8, 0x{f2u(C_SCALE):08x}")
    A(f"    v_cndmask_b32 v{vMask}, 0, v2, vcc")
    A(f"    s_lshl_b32 s4, s3, 9")
    A(f"    s_add_u32 s4, s4, {lds_o}")
    A("    v_lshl_add_u32 v2, v0, 3, s4")
    A("    s_lshl_b32 s4, s3, 3")
    A("    v_mov_b32 v3, s4")
    total = 1 + 2 * NL
    for i in range(NT):
        A(f"    s_waitcnt vmcnt({total - 1 - (4*i+4)})")
        for c in range(4):
            for t in range(4):
                k = vK + 16*i + 4*t + c
                s = vS + 4*i + t
                if c == 0:
                    A(f"    v_dot2_f32_bf16 v{s}, v{k}, v{vQ}, 0")
                else:
                    A(f"    v_dot2c_f32_bf16 v{s}, v{k}, v{vQ+c}")
        for step in (8, 4, 2, 1):
            for t in range(4):
                s = vS + 4*i + t
                A(f"    v_add_f32_dpp v{s}, v{s}, v{s} row_ror:{step} row_mask:0xf bank_mask:0xf")
    if stamps:
        A("    s_memrealtime s[68:69]")
    A(f"    v_max3_f32 v{vM}, v{vS}, v{vS+1}, v{vS+2}")
    i = 3
    while i < NL:
        if i + 1 < NL:
            A(f"    v_max3_f32 v{vM}, v{vM}, v{vS+i}, v{vS+i+1}")
            i += 2
        else:
            A(f"    v_max_f32 v{vM}, v{vM}, v{vS+i}")
            i += 1
    for sw in ("16", "32"):
        A(f"    v_mov_b32 v{vT}, v{vM}")
        A("    s_nop 1")
        A(f"    v_permlane{sw}_swap_b32 v{vM}, v{vT}")
        A("    s_nop 0")
        A(f"    v_max_f32 v{vM}, v{vM}, v{vT}")
    A(f"    v_mul_f32 v{vM}, s8, v{vM}")
    for k in range(NL):
        A(f"    v_fma_f32 v{vS+k}, v{vS+k}, s8, -v{vM}")
    for k in range(NL):
        A(f"    v_exp_f32 v{vS+k}, v{vS+k}")
    A("    s_nop 0")
    A(f"    v_add_f32 v{vL}, v{vS}, v{vS+1}")
    for k in range(2, NL):
        A(f"    v_add_f32 v{vL}, v{vL}, v{vS+k}")
    for k in range(NL):
        A(f"    v_and_b32 v{vT}, v{vS+k}, v{vMask}")
        A(f"    v_sub_f32 v{vS+k}, v{vS+k}, v{vT}")
        for r in range(4):
            A(f"    v_perm_b32 v{vK+4*k+r}, v{vS+k}, v{vS+k}, v{vSel+r}")
    for sw in ("16", "32"):
        A(f"    v_mov_b32 v{vT}, v{vL}")
        A("    s_nop 1")
        A(f"    v_permlane{sw}_swap_b32 v{vL}, v{vT}")
        A("    s_nop 0")
        A(f"    v_add_f32 v{vL}, v{vL}, v{vT}")
    A(f"    v_mov_b32 v{vT}, v{vM}")
    A("    s_mov_b64 exec, 1")
    A(f"    ds_write_b64 v3, v[{vT}:{vL}]")
    A("    s_mov_b64 exec, -1")
    A("    s_waitcnt lgkmcnt(0)")
    A("    s_barrier")
    if stamps:
        A("    s_memrealtime s[70:71]")
    for t in range(NL):
        A(f"    s_waitcnt vmcnt({NL-1-t})")
        c = "0" if t == 0 else f"v[{vAcc}:{vAcc+3}]"
        A(f"    v_mfma_f32_16x16x32_bf16 v[{vAcc}:{vAcc+3}], v[{vK+4*t}:{vK+4*t+3}], v[{vV+4*t}:{vV+4*t+3}], {c}")
    if stamps:
        A("    s_memrealtime s[72:73]")
    A("    s_nop 7")
    A(f"    v_permlane32_swap_b32 v{vAcc}, v{vAcc+2}")
    A(f"    v_permlane32_swap_b32 v{vAcc+1}, v{vAcc+3}")
    A("    s_nop 0")
    A(f"    v_add_f32 v{vAcc}, v{vAcc}, v{vAcc+2}")
    A(f"    v_add_f32 v{vAcc+1}, v{vAcc+1}, v{vAcc+3}")
    A(f"    ds_write_b64 v2, v[{vAcc}:{vAcc+1}]")
    A("    s_waitcnt lgkmcnt(0)")
    A("    s_barrier")
    if stamps:
        emit_stamps(A, NW, 5)
    A("    s_endpgm")

    A("L_helper:")
    A("    s_load_dwordx2 s[40:41], s[0:1], 64       ; ws")
    A("    s_load_dwordx2 s[44:45], s[0:1], 56       ; dbg")
    A("    s_load_dwordx2 s[48:49], s[0:1], 48       ; out")
    A("    s_load_dwordx2 s[52:53], s[0:1], 24       ; k_tree")
    A("    s_load_dwordx2 s[56:57], s[0:1], 32       ; v_tree")
    A("    s_load_dwordx2 s[88:89], s[0:1], 40       ; mask")
    A("    s_mov_b32 s42, 0x40000")
    A("    s_mov_b32 s43, 0x20000")
    A("    s_mov_b32 s46, 256")
    A("    s_mov_b32 s47, 0x20000")
    A("    s_mov_b32 s50, 8192")
    A("    s_mov_b32 s51, 0x20000")
    A("    s_mov_b32 s54, 8192")
    A("    s_mov_b32 s55, 0x20000")
    A("    s_mov_b32 s58, 8192")
    A("    s_mov_b32 s59, 0x20000")
    A("    s_lshl_b32 s4, s22, 13")
    A("    s_lshl_b32 s5, s23, 10")
    A("    s_add_u32 s5, s5, s4")
    A("    v_lshlrev_b32 v1, 3, v0                   ; lane*8")
    A("    v_add_u32 v2, s5, v1")
    A("    v_mov_b32 v4, -1")
    A("    v_mov_b32 v5, -1")
    A("    s_lshl_b32 s6, s22, 2")
    A("    s_add_u32 s6, s6, 128")
    A("    v_mov_b32 v3, s6")
    A("    v_mov_b32 v6, 1")
    A("    v_and_b32 v7, 15, v0")
    A("    v_lshlrev_b32 v7, 2, v7")
    A("    v_bfe_u32 v8, v0, 4, 1")
    A("    v_lshl_add_u32 v7, v8, 1, v7")
    A("    v_lshrrev_b32 v8, 5, v0")
    A("    v_add_u32 v7, v7, v8")
    A("    s_lshl_b32 s6, s22, 8")
    A("    v_lshl_add_u32 v7, v7, 2, s6")
    A("    v_mov_b32 v8, 0")
    A("    s_waitcnt lgkmcnt(0)")
    A("    buffer_store_dwordx2 v[4:5], v2, s[40:43], 0 offen sc1")
    A("    buffer_store_dwordx2 v[4:5], v2, s[40:43], 0 offen offset:512 sc1")
    A("    s_waitcnt vmcnt(0)")
    A("    s_mov_b64 exec, 1")
    A("    buffer_atomic_add v6, v3, s[44:47], 0 offen sc1")
    A("    s_mov_b64 exec, -1")
    A(f"    s_cmp_lg_u32 s23, {cons}")
    A("    s_cbranch_scc1 L_h1")
    A("    buffer_load_dword v10, v7, s[32:35], 0 offen   ; q pair")
    A("    buffer_load_dword v11, v7, s[52:55], 0 offen")
    A("    buffer_load_dword v12, v7, s[56:59], 0 offen")
    A("    global_load_ushort v13, v8, s[88:89]       ; mask")
    A("    s_waitcnt vmcnt(0)")
    A("    v_dot2_f32_bf16 v10, v10, v11, 0")
    A("    v_lshlrev_b32 v13, 16, v13                ; mask f32")
    A("    v_sub_f32 v13, 1.0, v13")
    A("    s_nop 1")
    for step in (8, 4, 2, 1):
        A(f"    v_add_f32_dpp v10, v10, v10 row_ror:{step} row_mask:0xf bank_mask:0xf")
        A("    s_nop 1")
    for sw in ("16", "32"):
        A("    v_mov_b32 v11, v10")
        A("    s_nop 1")
        A(f"    v_permlane{sw}_swap_b32 v10, v11")
        A("    s_nop 0")
        A("    v_add_f32 v10, v10, v11")
    A(f"    v_mul_f32 v10, 0x{f2u(C_SCALE):08x}, v10")
    A(f"    v_mul_f32 v13, 0x{f2u(-1e9*LOG2E):08x}, v13")
    A("    v_add_f32 v10, v10, v13")
    A("    v_lshlrev_b32 v11, 16, v12")
    A("    v_and_b32 v12, 0xffff0000, v12")
    A("    s_mov_b32 s92, 0x40000")
    A("L_poll_ann:")
    A("    buffer_load_dword v14, v3, s[44:47], 0 offen sc1")
    A("    s_waitcnt vmcnt(0)")
    A("    v_readfirstlane_b32 s6, v14")
    A("    s_cmp_ge_u32 s6, 8")
    A("    s_cbranch_scc1 L_h1")
    A("    s_sleep 2")
    A("    s_sub_u32 s92, s92, 1")
    A("    s_cbranch_scc0 L_poll_ann")
    A("L_h1:")
    A(f"    v_and_b32 v14, {NW-1}, v0")
    A("    v_lshlrev_b32 v14, 3, v14")
    A("    s_barrier")
    A("    ds_read_b64 v[16:17], v14                 ; (m_w, l_w)")
    A("    s_waitcnt lgkmcnt(0)")
    A("    v_mov_b32 v18, v16")
    steps = [s for s in (8, 4, 2, 1) if s < NW]
    for step in steps:
        A("    s_nop 1")
        A(f"    v_max_f32_dpp v18, v18, v18 row_ror:{step} row_mask:0xf bank_mask:0xf")
    A("    v_sub_f32 v16, v16, v18")
    A("    v_exp_f32 v16, v16                        ; f_w")
    A("    s_nop 0")
    A("    v_mul_f32 v19, v16, v17")
    for step in steps:
        A("    s_nop 1")
        A(f"    v_add_f32_dpp v19, v19, v19 row_ror:{step} row_mask:0xf bank_mask:0xf")
    A("    v_min_u32 v20, -2, v18")
    A("    v_min_u32 v21, -2, v19")
    A("    v_mov_b32 v15, s5")
    A("    s_mov_b64 exec, 1")
    A("    buffer_store_dwordx2 v[20:21], v15, s[40:43], 0 offen offset:512 sc1")
    A("    s_mov_b64 exec, -1")
    A(f"    s_cmp_lg_u32 s23, {cons}")
    A("    s_cbranch_scc1 L_h2")
    A("    v_and_b32 v15, 7, v0")
    A("    v_lshl_add_u32 v15, v15, 10, s4")
    A("    s_mov_b32 s92, 0x40000")
    A("L_poll_ml:")
    A("    buffer_load_dwordx2 v[22:23], v15, s[40:43], 0 offen offset:512 sc1")
    A("    s_waitcnt vmcnt(0)")
    A("    v_max_u32 v24, v22, v23")
    A("    v_cmp_eq_u32 vcc, -1, v24")
    A("    s_cbranch_vccz L_ml_ok")
    A("    s_sleep 2")
    A("    s_sub_u32 s92, s92, 1")
    A("    s_cbranch_scc0 L_poll_ml")
    A("L_ml_ok:")
    A("    v_max_f32 v24, v22, v10")
    for step in (4, 2, 1):
        A("    s_nop 1")
        A(f"    v_max_f32_dpp v24, v24, v24 row_ror:{step} row_mask:0xf bank_mask:0xf")
    A("    v_sub_f32 v22, v22, v24")
    A("    v_sub_f32 v10, v10, v24")
    A("    v_exp_f32 v22, v22                        ; w_s")
    A("    v_exp_f32 v10, v10                        ; w_tree")
    A("    s_nop 0")
    A("    v_mul_f32 v23, v22, v23")
    for step in (4, 2, 1):
        A("    s_nop 1")
        A(f"    v_add_f32_dpp v23, v23, v23 row_ror:{step} row_mask:0xf bank_mask:0xf")
    A("    v_add_f32 v23, v23, v10                   ; L")
    A("    v_rcp_f32 v23, v23")
    A("    s_nop 0")
    A("    v_mul_f32 v22, v22, v23                   ; W_s")
    A("    v_mul_f32 v10, v10, v23                   ; W_tree")
    A("    v_mul_f32 v11, v11, v10")
    A("    v_mul_f32 v12, v12, v10")
    for s in range(8):
        A(f"    v_readlane_b32 s{80+s}, v22, {s}")
    A("    s_nop 1")
    A(f"    v_mul_f32 v16, s{80+cons}, v16")
    A("    v_add_u32 v15, s4, v1")
    A("L_h2:")
    A("    s_nop 1")
    for w in range(NW):
        A(f"    v_readlane_b32 s{8+w}, v16, {w}")
    A(f"    v_add_u32 v14, {lds_o}, v1")
    A("    s_barrier")
    for w in range(NW):
        A(f"    ds_read_b64 v[{32+2*w}:{33+2*w}], v14 offset:{512*w}")
    for w in range(NW):
        A(f"    s_waitcnt lgkmcnt({NW-1-w})")
        if w == 0:
            A(f"    v_mul_f32 v20, s8, v32")
            A(f"    v_mul_f32 v21, s8, v33")
        else:
            A(f"    v_fmac_f32 v20, s{8+w}, v{32+2*w}")
            A(f"    v_fmac_f32 v21, s{8+w}, v{33+2*w}")
    A(f"    s_cmp_eq_u32 s23, {cons}")
    A("    s_cbranch_scc1 L_final")
    A("    v_min_u32 v20, -2, v20")
    A("    v_min_u32 v21, -2, v21")
    A("    buffer_store_dwordx2 v[20:21], v2, s[40:43], 0 offen sc1")
    if stamps:
        A("    s_memrealtime s[66:67]")
        A("    s_mov_b64 s[68:69], 0")
        A("    s_mov_b64 s[70:71], 0")
        A("    s_mov_b64 s[72:73], 0")
        emit_stamps(A, NW, 5)
    A("    s_endpgm")
    A("L_final:")
    A("    v_add_f32 v11, v11, v20")
    A("    v_add_f32 v12, v12, v21")
    if stamps:
        A("    s_memrealtime s[66:67]")
    others = [s for s in range(8) if s != cons]
    A("    s_mov_b32 s92, 0x40000")
    A("L_poll_o:")
    for j, s in enumerate(others):
        off = 1024 * s
        so = "0"
        if off >= 4096:
            so = "s7"; off -= 4096
        if j == 0:
            A("    s_movk_i32 s7, 4096")
        A(f"    buffer_load_dwordx2 v[{32+2*j}:{33+2*j}], v15, s[40:43], {so} offen offset:{off} sc1")
    A("    s_waitcnt vmcnt(0)")
    A("    v_max3_u32 v24, v32, v33, v34")
    for j in range(3, 13, 2):
        A(f"    v_max3_u32 v24, v24, v{32+j}, v{33+j}")
    A("    v_max_u32 v24, v24, v45")
    A("    v_cmp_eq_u32 vcc, -1, v24")
    A("    s_cbranch_vccz L_o_ok")
    A("    s_sub_u32 s92, s92, 1")
    A("    s_cbranch_scc0 L_poll_o")
    A("L_o_ok:")
    for j, s in enumerate(others):
        A(f"    v_fmac_f32 v11, s{80+s}, v{32+2*j}")
        A(f"    v_fmac_f32 v12, s{80+s}, v{33+2*j}")
    A("    v_cvt_pk_bf16_f32 v11, v11, v12")
    A("    buffer_store_dword v11, v7, s[48:51], 0 offen")
    if stamps:
        A("    s_memrealtime s[68:69]")
        A("    s_mov_b64 s[70:71], 0")
        A("    s_mov_b64 s[72:73], 0")
        emit_stamps(A, NW, 5)
    if AMP:
        A("    s_memrealtime s[68:69]")
        A("    s_waitcnt lgkmcnt(0)")
        A("    s_sub_u32 s70, s68, s64")
        A("    s_mul_i32 s70, s70, 10")
        A("L_amp:")
        A("    s_memrealtime s[72:73]")
        A("    s_waitcnt lgkmcnt(0)")
        A("    s_sub_u32 s71, s72, s68")
        A("    s_cmp_lt_u32 s71, s70")
        A("    s_cbranch_scc1 L_amp")
    A("L_end:")
    A("    s_endpgm")
    nv = max(vEnd, 48)
    A('.section .rodata,"a"')
    A(".p2align 6")
    A(f".amdhsa_kernel {NAME}_kernel")
    A(f"  .amdhsa_next_free_vgpr {nv}")
    A("  .amdhsa_next_free_sgpr 96")
    A(f"  .amdhsa_accum_offset {(nv+3)//4*4}")
    A("  .amdhsa_group_segment_fixed_size 0")
    A("  .amdhsa_kernarg_size 72")
    A("  .amdhsa_user_sgpr_count 2")
    A("  .amdhsa_user_sgpr_kernarg_segment_ptr 1")
    A("  .amdhsa_system_sgpr_workgroup_id_x 1")
    A(".end_amdhsa_kernel")
    return "\n".join(o) + "\n"


DBGSTAMP = False
AMP = False
def emit_stamps(A, NW, n):
    if DBGSTAMP:
        A("    s_memrealtime s[74:75]")
        A("    s_load_dwordx2 s[60:61], s[0:1], 56")
        A("    s_waitcnt lgkmcnt(0)")
        A("    s_getreg_b32 s5, hwreg(HW_REG_XCC_ID)")
        A("    s_and_b32 s5, s5, 7")
        A("    s_lshl_b32 s5, s5, 2")
        A("    s_not_b32 s64, s64")
        A("    s_mov_b64 exec, 1")
        A("    v_mov_b32 v0, 0")
        A("    v_mov_b32 v1, s5")
        A("    v_mov_b32 v4, s64")
        A("    global_atomic_umax v0, v4, s[60:61] sc1")
        A("    global_atomic_umax v1, v4, s[60:61] offset:32 sc1")
        for i in range(1, 6):
            A(f"    v_mov_b32 v{4+i}, s{64+2*i}")
        A(f"    s_cmp_eq_u32 s3, {NW}")
        A("    s_cbranch_scc1 1f")
        for i in range(1, 6):
            A(f"    global_atomic_umax v0, v{4+i}, s[60:61] offset:{4*i} sc1")
        A("    s_branch 2f")
        A("1:")
        A(f"    global_atomic_umax v0, v5, s[60:61] offset:24 sc1")
        A(f"    global_atomic_umax v0, v9, s[60:61] offset:28 sc1")
        A("2:")
        return

    A("    s_memrealtime s[74:75]")
    A("    s_waitcnt lgkmcnt(0)")
    A(f"    s_mul_i32 s4, s2, {NW+1}")
    A("    s_add_u32 s4, s4, s3")
    A("    s_lshl_b32 s4, s4, 6")
    A("    s_add_u32 s4, s4, 0x100000")
    A("    v_mov_b32 v0, s4")
    A("    s_getreg_b32 s5, hwreg(HW_REG_XCC_ID)")
    A("    s_getreg_b32 s6, hwreg(HW_REG_HW_ID)")
    for i in range(6):
        A(f"    v_mov_b32 v{4+i}, s{64+2*i}")
    A("    v_mov_b32 v10, s5")
    A("    v_mov_b32 v11, s6")
    A("    s_mov_b64 exec, 1")
    A("    global_store_dwordx4 v0, v[4:7], s[60:61]")
    A("    global_store_dwordx4 v0, v[8:11], s[60:61] offset:16")


if __name__ == "__main__":
    ap = argparse.ArgumentParser()
    ap.add_argument("--nw", type=int, default=8)
    ap.add_argument("--no-nt", action="store_true")
    ap.add_argument("--stamps", action="store_true")
    ap.add_argument("--cons", type=int, default=7)
    ap.add_argument("-o", default="-")
    ap.add_argument("--dbgstamps", action="store_true")
    ap.add_argument("--amp", action="store_true")
    a = ap.parse_args()
    AMP = a.amp
    if a.dbgstamps:
        DBGSTAMP = True
        a.stamps = True
    s = gen(NW=a.nw, nt=not a.no_nt, stamps=a.stamps, cons=a.cons)
    if a.o == "-":
        sys.stdout.write(s)
    else:
        open(a.o, "w").write(s)
```

```python
import sys, argparse

NAME = "standalone__tree_speculative_verify_tree_attention_over_candidate_token_tree__decode"

HEADER = """; Kernarg layout for this problem (72 bytes, ptrs only, base s[0:1]):
"""

import struct
def f2u(x):
    return struct.unpack("<I", struct.pack("<f", x))[0]

C_SCALE = (128 ** -0.5) * 1.4426950408889634
LOG2E = 1.4426950408889634


def gen(NW=8, nt=True, stamps=False, cons=7):
    KPW = 512 // NW
    NL = KPW // 4
    NT = NL // 4
    pol = " nt" if nt else ""
    o = []
    A = o.append
    A(HEADER.rstrip())
    lds_o = 256
    lds_bytes = lds_o + NW * 512
    A(f"; @launch grid=(256,1,1) block=({(NW+1)*64},1,1) lds={lds_bytes}")
    A('.amdgcn_target "amdgcn-amd-amdhsa--gfx950"')
    A(".text")
    A(f".globl {NAME}_kernel")
    A(".p2align 8")
    A(f".type {NAME}_kernel,@function")
    A(f"{NAME}_kernel:")
    vQ = 4
    vSel = 8
    vMask = 12
    vM = 13; vT = 14; vL = 15
    vAcc = 16
    vS = 20
    vK = 20 + NL
    vK = (vK + 3) // 4 * 4
    vV = vK + 4 * NL
    vEnd = vV + 4 * NL
    A("    s_load_dwordx2 s[24:25], s[0:1], 8        ; K")
    A("    s_load_dwordx2 s[28:29], s[0:1], 16       ; V")
    A("    s_load_dwordx2 s[32:33], s[0:1], 0        ; q")
    if stamps:
        A("    s_load_dwordx2 s[60:61], s[0:1], 64")
    if stamps or AMP or PROBE is not None:
        A("    s_memrealtime s[64:65]")
    A("    s_cmp_ge_u32 s2, 256")
    A("    s_cbranch_scc1 L_end")
    A("    v_lshrrev_b32 v1, 6, v0")
    A("    v_and_b32 v0, 63, v0                      ; lane")
    A("    v_readfirstlane_b32 s3, v1")
    A("    s_and_b32 s22, s2, 7")
    A("    s_lshl_b32 s22, s22, 2")
    A("    s_bfe_u32 s23, s2, 0x20003")
    A("    s_or_b32 s22, s22, s23                    ; head")
    A("    s_lshr_b32 s23, s2, 5                     ; split")
    A("    s_mov_b32 s26, 0x2000000")
    A("    s_mov_b32 s27, 0x20000")
    A("    s_mov_b32 s30, 0x2000000")
    A("    s_mov_b32 s31, 0x20000")
    A("    s_mov_b32 s34, 8192")
    A("    s_mov_b32 s35, 0x20000")
    A(f"    s_cmp_eq_u32 s3, {NW}")
    A("    s_cbranch_scc1 L_helper")
    A("    s_lshl_b32 s4, s22, 20")
    A("    s_lshl_b32 s5, s23, 17")
    A("    s_add_u32 s4, s4, s5")
    A(f"    s_mul_i32 s5, s3, {KPW*256}")
    A("    s_add_u32 s4, s4, s5")
    A("    v_lshl_add_u32 v1, v0, 4, s4")
    A("    v_and_b32 v2, 15, v0")
    A("    s_lshl_b32 s5, s22, 8")
    A("    v_lshl_add_u32 v2, v2, 4, s5")
    for i in range(1, NT):
        A(f"    s_mov_b32 s{35+i}, {4096*i}")
    A("    s_waitcnt lgkmcnt(0)")
    A(f"    buffer_load_dwordx4 v[{vQ}:{vQ+3}], v2, s[32:35], 0 offen")
    def soff(i):
        return "0" if i == 0 else f"s{35+i}"
    for t in range(NL):
        off = f" offset:{(t%4)*1024}" if t % 4 else ""
        A(f"    buffer_load_dwordx4 v[{vK+4*t}:{vK+4*t+3}], v1, s[24:27], {soff(t//4)} offen{off}{pol}")
    for t in range(NL):
        off = f" offset:{(t%4)*1024}" if t % 4 else ""
        A(f"    buffer_load_dwordx4 v[{vV+4*t}:{vV+4*t+3}], v1, s[28:31], {soff(t//4)} offen{off}{pol}")
    if stamps:
        A("    s_memrealtime s[66:67]")
    A("    v_and_b32 v3, 1, v0")
    A("    v_mov_b32 v2, 0x0c0c0302")
    A(f"    v_mov_b32 v{vT}, 0x03020c0c")
    A("    v_cmp_eq_u32 vcc, 1, v3")
    A("    v_bfe_u32 v3, v0, 1, 2")
    A(f"    v_mov_b32 v{vM}, 0x0c0c0c0c")
    A(f"    v_cndmask_b32 v2, v2, v{vT}, vcc")
    for r in range(4):
        A(f"    v_cmp_eq_u32 vcc, {r}, v3")
        A("    s_nop 1")
        A(f"    v_cndmask_b32 v{vSel+r}, v{vM}, v2, vcc")
    A("    v_and_b32 v3, 8, v0")
    A("    v_cmp_eq_u32 vcc, 8, v3")
    A("    v_mov_b32 v2, 0xffff0000")
    A(f"    s_mov_b32 s8, 0x{f2u(C_SCALE):08x}")
    A(f"    v_cndmask_b32 v{vMask}, 0, v2, vcc")
    A(f"    s_lshl_b32 s4, s3, 9")
    A(f"    s_add_u32 s4, s4, {lds_o}")
    A("    v_lshl_add_u32 v2, v0, 3, s4")
    A("    s_lshl_b32 s4, s3, 3")
    A("    v_mov_b32 v3, s4")
    total = 1 + 2 * NL
    for i in range(NT):
        A(f"    s_waitcnt vmcnt({total - 1 - (4*i+4)})")
        for c in range(4):
            for t in range(4):
                k = vK + 16*i + 4*t + c
                s = vS + 4*i + t
                if c == 0:
                    A(f"    v_dot2_f32_bf16 v{s}, v{k}, v{vQ}, 0")
                else:
                    A(f"    v_dot2c_f32_bf16 v{s}, v{k}, v{vQ+c}")
        for step in (8, 4, 2, 1):
            for t in range(4):
                s = vS + 4*i + t
                A(f"    v_add_f32_dpp v{s}, v{s}, v{s} row_ror:{step} row_mask:0xf bank_mask:0xf")
    if stamps:
        A("    s_memrealtime s[68:69]")
    A(f"    v_max3_f32 v{vM}, v{vS}, v{vS+1}, v{vS+2}")
    i = 3
    while i < NL:
        if i + 1 < NL:
            A(f"    v_max3_f32 v{vM}, v{vM}, v{vS+i}, v{vS+i+1}")
            i += 2
        else:
            A(f"    v_max_f32 v{vM}, v{vM}, v{vS+i}")
            i += 1
    for sw in ("16", "32"):
        A(f"    v_mov_b32 v{vT}, v{vM}")
        A("    s_nop 1")
        A(f"    v_permlane{sw}_swap_b32 v{vM}, v{vT}")
        A("    s_nop 0")
        A(f"    v_max_f32 v{vM}, v{vM}, v{vT}")
    A(f"    v_mul_f32 v{vM}, s8, v{vM}")
    for k in range(NL):
        A(f"    v_fma_f32 v{vS+k}, v{vS+k}, s8, -v{vM}")
    for k in range(NL):
        A(f"    v_exp_f32 v{vS+k}, v{vS+k}")
    A("    s_nop 0")
    A(f"    v_add_f32 v{vL}, v{vS}, v{vS+1}")
    for k in range(2, NL):
        A(f"    v_add_f32 v{vL}, v{vL}, v{vS+k}")
    for k in range(NL):
        A(f"    v_and_b32 v{vT}, v{vS+k}, v{vMask}")
        A(f"    v_sub_f32 v{vS+k}, v{vS+k}, v{vT}")
        for r in range(4):
            A(f"    v_perm_b32 v{vK+4*k+r}, v{vS+k}, v{vS+k}, v{vSel+r}")
    for sw in ("16", "32"):
        A(f"    v_mov_b32 v{vT}, v{vL}")
        A("    s_nop 1")
        A(f"    v_permlane{sw}_swap_b32 v{vL}, v{vT}")
        A("    s_nop 0")
        A(f"    v_add_f32 v{vL}, v{vL}, v{vT}")
    A(f"    v_mov_b32 v{vT}, v{vM}")
    A("    s_mov_b64 exec, 1")
    A(f"    ds_write_b64 v3, v[{vT}:{vL}]")
    A("    s_mov_b64 exec, -1")
    A("    s_waitcnt lgkmcnt(0)")
    A("    s_barrier")
    if stamps:
        A("    s_memrealtime s[70:71]")
    for t in range(NL):
        A(f"    s_waitcnt vmcnt({NL-1-t})")
        c = "0" if t == 0 else f"v[{vAcc}:{vAcc+3}]"
        A(f"    v_mfma_f32_16x16x32_bf16 v[{vAcc}:{vAcc+3}], v[{vK+4*t}:{vK+4*t+3}], v[{vV+4*t}:{vV+4*t+3}], {c}")
    if stamps:
        A("    s_memrealtime s[72:73]")
    A("    s_nop 7")
    A(f"    v_permlane32_swap_b32 v{vAcc}, v{vAcc+2}")
    A(f"    v_permlane32_swap_b32 v{vAcc+1}, v{vAcc+3}")
    A("    s_nop 0")
    A(f"    v_add_f32 v{vAcc}, v{vAcc}, v{vAcc+2}")
    A(f"    v_add_f32 v{vAcc+1}, v{vAcc+1}, v{vAcc+3}")
    A(f"    ds_write_b64 v2, v[{vAcc}:{vAcc+1}]")
    A("    s_waitcnt lgkmcnt(0)")
    A("    s_barrier")
    if stamps:
        emit_stamps(A, NW, 5)
    A("    s_endpgm")

    A("L_helper:")
    A("    s_load_dwordx2 s[40:41], s[0:1], 64       ; ws")
    A("    s_load_dwordx2 s[44:45], s[0:1], 56       ; dbg")
    A("    s_load_dwordx2 s[48:49], s[0:1], 48       ; out")
    A("    s_load_dwordx2 s[52:53], s[0:1], 24       ; k_tree")
    A("    s_load_dwordx2 s[56:57], s[0:1], 32       ; v_tree")
    A("    s_load_dwordx2 s[88:89], s[0:1], 40       ; mask")
    A("    s_mov_b32 s42, 0x40000")
    A("    s_mov_b32 s43, 0x20000")
    A("    s_mov_b32 s46, 256")
    A("    s_mov_b32 s47, 0x20000")
    A("    s_mov_b32 s50, 8192")
    A("    s_mov_b32 s51, 0x20000")
    A("    s_mov_b32 s54, 8192")
    A("    s_mov_b32 s55, 0x20000")
    A("    s_mov_b32 s58, 8192")
    A("    s_mov_b32 s59, 0x20000")
    A("    s_lshl_b32 s4, s22, 13")
    A("    s_lshl_b32 s5, s23, 10")
    A("    s_add_u32 s5, s5, s4")
    A("    v_lshlrev_b32 v1, 3, v0                   ; lane*8")
    A("    v_add_u32 v2, s5, v1")
    A("    v_mov_b32 v4, -1")
    A("    v_mov_b32 v5, -1")
    A("    s_lshl_b32 s6, s22, 2")
    A("    s_add_u32 s6, s6, 128")
    A("    v_mov_b32 v3, s6")
    A("    v_mov_b32 v6, 1")
    A("    v_and_b32 v7, 15, v0")
    A("    v_lshlrev_b32 v7, 2, v7")
    A("    v_bfe_u32 v8, v0, 4, 1")
    A("    v_lshl_add_u32 v7, v8, 1, v7")
    A("    v_lshrrev_b32 v8, 5, v0")
    A("    v_add_u32 v7, v7, v8")
    A("    s_lshl_b32 s6, s22, 8")
    A("    v_lshl_add_u32 v7, v7, 2, s6")
    A("    v_mov_b32 v8, 0")
    A("    s_waitcnt lgkmcnt(0)")
    A("    buffer_store_dwordx2 v[4:5], v2, s[40:43], 0 offen sc1")
    A("    buffer_store_dwordx2 v[4:5], v2, s[40:43], 0 offen offset:512 sc1")
    A("    s_waitcnt vmcnt(0)")
    A("    s_mov_b64 exec, 1")
    A("    buffer_atomic_add v6, v3, s[44:47], 0 offen sc1")
    A("    s_mov_b64 exec, -1")
    A(f"    s_cmp_lg_u32 s23, {cons}")
    A("    s_cbranch_scc1 L_h1")
    A("    buffer_load_dword v10, v7, s[32:35], 0 offen   ; q pair")
    A("    buffer_load_dword v11, v7, s[52:55], 0 offen")
    A("    buffer_load_dword v12, v7, s[56:59], 0 offen")
    A("    global_load_ushort v13, v8, s[88:89]       ; mask")
    A("    s_waitcnt vmcnt(0)")
    A("    v_dot2_f32_bf16 v10, v10, v11, 0")
    A("    v_lshlrev_b32 v13, 16, v13                ; mask f32")
    A("    v_sub_f32 v13, 1.0, v13")
    A("    s_nop 1")
    for step in (8, 4, 2, 1):
        A(f"    v_add_f32_dpp v10, v10, v10 row_ror:{step} row_mask:0xf bank_mask:0xf")
        A("    s_nop 1")
    for sw in ("16", "32"):
        A("    v_mov_b32 v11, v10")
        A("    s_nop 1")
        A(f"    v_permlane{sw}_swap_b32 v10, v11")
        A("    s_nop 0")
        A("    v_add_f32 v10, v10, v11")
    A(f"    v_mul_f32 v10, 0x{f2u(C_SCALE):08x}, v10")
    A(f"    v_mul_f32 v13, 0x{f2u(-1e9*LOG2E):08x}, v13")
    A("    v_add_f32 v10, v10, v13")
    A("    v_lshlrev_b32 v11, 16, v12")
    A("    v_and_b32 v12, 0xffff0000, v12")
    A("    s_mov_b32 s92, 0x40000")
    A("L_poll_ann:")
    A("    buffer_load_dword v14, v3, s[44:47], 0 offen sc1")
    A("    s_waitcnt vmcnt(0)")
    A("    v_readfirstlane_b32 s6, v14")
    A("    s_cmp_ge_u32 s6, 8")
    A("    s_cbranch_scc1 L_h1")
    A("    s_sleep 2")
    A("    s_sub_u32 s92, s92, 1")
    A("    s_cbranch_scc0 L_poll_ann")
    A("L_h1:")
    A(f"    v_and_b32 v14, {NW-1}, v0")
    A("    v_lshlrev_b32 v14, 3, v14")
    A("    s_barrier")
    A("    ds_read_b64 v[16:17], v14                 ; (m_w, l_w)")
    A("    s_waitcnt lgkmcnt(0)")
    A("    v_mov_b32 v18, v16")
    steps = [s for s in (8, 4, 2, 1) if s < NW]
    for step in steps:
        A("    s_nop 1")
        A(f"    v_max_f32_dpp v18, v18, v18 row_ror:{step} row_mask:0xf bank_mask:0xf")
    A("    v_sub_f32 v16, v16, v18")
    A("    v_exp_f32 v16, v16                        ; f_w")
    A("    s_nop 0")
    A("    v_mul_f32 v19, v16, v17")
    for step in steps:
        A("    s_nop 1")
        A(f"    v_add_f32_dpp v19, v19, v19 row_ror:{step} row_mask:0xf bank_mask:0xf")
    A("    v_min_u32 v20, -2, v18")
    A("    v_min_u32 v21, -2, v19")
    A("    v_mov_b32 v15, s5")
    A("    s_mov_b64 exec, 1")
    A("    buffer_store_dwordx2 v[20:21], v15, s[40:43], 0 offen offset:512 sc1")
    A("    s_mov_b64 exec, -1")
    A(f"    s_cmp_lg_u32 s23, {cons}")
    A("    s_cbranch_scc1 L_h2")
    A("    v_and_b32 v15, 7, v0")
    A("    v_lshl_add_u32 v15, v15, 10, s4")
    A("    s_mov_b32 s92, 0x40000")
    A("L_poll_ml:")
    A("    buffer_load_dwordx2 v[22:23], v15, s[40:43], 0 offen offset:512 sc1")
    A("    s_waitcnt vmcnt(0)")
    A("    v_max_u32 v24, v22, v23")
    A("    v_cmp_eq_u32 vcc, -1, v24")
    A("    s_cbranch_vccz L_ml_ok")
    A("    s_sleep 2")
    A("    s_sub_u32 s92, s92, 1")
    A("    s_cbranch_scc0 L_poll_ml")
    A("L_ml_ok:")
    A("    v_max_f32 v24, v22, v10")
    for step in (4, 2, 1):
        A("    s_nop 1")
        A(f"    v_max_f32_dpp v24, v24, v24 row_ror:{step} row_mask:0xf bank_mask:0xf")
    A("    v_sub_f32 v22, v22, v24")
    A("    v_sub_f32 v10, v10, v24")
    A("    v_exp_f32 v22, v22                        ; w_s")
    A("    v_exp_f32 v10, v10                        ; w_tree")
    A("    s_nop 0")
    A("    v_mul_f32 v23, v22, v23")
    for step in (4, 2, 1):
        A("    s_nop 1")
        A(f"    v_add_f32_dpp v23, v23, v23 row_ror:{step} row_mask:0xf bank_mask:0xf")
    A("    v_add_f32 v23, v23, v10                   ; L")
    A("    v_rcp_f32 v23, v23")
    A("    s_nop 0")
    A("    v_mul_f32 v22, v22, v23                   ; W_s")
    A("    v_mul_f32 v10, v10, v23                   ; W_tree")
    A("    v_mul_f32 v11, v11, v10")
    A("    v_mul_f32 v12, v12, v10")
    for s in range(8):
        A(f"    v_readlane_b32 s{80+s}, v22, {s}")
    A("    s_nop 1")
    A(f"    v_mul_f32 v16, s{80+cons}, v16")
    A("    v_add_u32 v15, s4, v1")
    A("L_h2:")
    A("    s_nop 1")
    for w in range(NW):
        A(f"    v_readlane_b32 s{8+w}, v16, {w}")
    A(f"    v_add_u32 v14, {lds_o}, v1")
    A("    s_barrier")
    if PROBE is not None:
        A("    s_memrealtime s[66:67]")
    for w in range(NW):
        A(f"    ds_read_b64 v[{32+2*w}:{33+2*w}], v14 offset:{512*w}")
    for w in range(NW):
        A(f"    s_waitcnt lgkmcnt({NW-1-w})")
        if w == 0:
            A(f"    v_mul_f32 v20, s8, v32")
            A(f"    v_mul_f32 v21, s8, v33")
        else:
            A(f"    v_fmac_f32 v20, s{8+w}, v{32+2*w}")
            A(f"    v_fmac_f32 v21, s{8+w}, v{33+2*w}")
    A(f"    s_cmp_eq_u32 s23, {cons}")
    A("    s_cbranch_scc1 L_final")
    A("    v_min_u32 v20, -2, v20")
    A("    v_min_u32 v21, -2, v21")
    A("    buffer_store_dwordx2 v[20:21], v2, s[40:43], 0 offen sc1")
    if stamps:
        A("    s_memrealtime s[66:67]")
        A("    s_mov_b64 s[68:69], 0")
        A("    s_mov_b64 s[70:71], 0")
        A("    s_mov_b64 s[72:73], 0")
        emit_stamps(A, NW, 5)
    if PROBE is not None:
        A("    s_branch L_probe")
    A("    s_endpgm")
    A("L_final:")
    A("    v_add_f32 v11, v11, v20")
    A("    v_add_f32 v12, v12, v21")
    if stamps:
        A("    s_memrealtime s[66:67]")
    others = [s for s in range(8) if s != cons]
    A("    s_mov_b32 s92, 0x40000")
    A("L_poll_o:")
    for j, s in enumerate(others):
        off = 1024 * s
        so = "0"
        if off >= 4096:
            so = "s7"; off -= 4096
        if j == 0:
            A("    s_movk_i32 s7, 4096")
        A(f"    buffer_load_dwordx2 v[{32+2*j}:{33+2*j}], v15, s[40:43], {so} offen offset:{off} sc1")
    A("    s_waitcnt vmcnt(0)")
    A("    v_max3_u32 v24, v32, v33, v34")
    for j in range(3, 13, 2):
        A(f"    v_max3_u32 v24, v24, v{32+j}, v{33+j}")
    A("    v_max_u32 v24, v24, v45")
    A("    v_cmp_eq_u32 vcc, -1, v24")
    A("    s_cbranch_vccz L_o_ok")
    A("    s_sub_u32 s92, s92, 1")
    A("    s_cbranch_scc0 L_poll_o")
    A("L_o_ok:")
    for j, s in enumerate(others):
        A(f"    v_fmac_f32 v11, s{80+s}, v{32+2*j}")
        A(f"    v_fmac_f32 v12, s{80+s}, v{33+2*j}")
    A("    v_cvt_pk_bf16_f32 v11, v11, v12")
    A("    buffer_store_dword v11, v7, s[48:51], 0 offen")
    if stamps:
        A("    s_memrealtime s[68:69]")
        A("    s_mov_b64 s[70:71], 0")
        A("    s_mov_b64 s[72:73], 0")
        emit_stamps(A, NW, 5)
    if AMP:
        A("    s_memrealtime s[68:69]")
        A("    s_waitcnt lgkmcnt(0)")
        A("    s_sub_u32 s70, s68, s64")
        A("    s_mul_i32 s70, s70, 10")
        A("L_amp:")
        A("    s_memrealtime s[72:73]")
        A("    s_waitcnt lgkmcnt(0)")
        A("    s_sub_u32 s71, s72, s68")
        A("    s_cmp_lt_u32 s71, s70")
        A("    s_cbranch_scc1 L_amp")
    if PROBE is not None:
        emit_probe(A, PROBE)
    A("L_end:")
    A("    s_endpgm")
    nv = max(vEnd, 48)
    A('.section .rodata,"a"')
    A(".p2align 6")
    A(f".amdhsa_kernel {NAME}_kernel")
    A(f"  .amdhsa_next_free_vgpr {nv}")
    A("  .amdhsa_next_free_sgpr 96")
    A(f"  .amdhsa_accum_offset {(nv+3)//4*4}")
    A("  .amdhsa_group_segment_fixed_size 0")
    A("  .amdhsa_kernarg_size 72")
    A("  .amdhsa_user_sgpr_count 2")
    A("  .amdhsa_user_sgpr_kernarg_segment_ptr 1")
    A("  .amdhsa_system_sgpr_workgroup_id_x 1")
    A(".end_amdhsa_kernel")
    return "\n".join(o) + "\n"


PROBE = None
def emit_probe(A, idx, amp=20):
    A("L_probe:")
    A("    s_memrealtime s[68:69]")
    A("    s_getreg_b32 s5, hwreg(HW_REG_XCC_ID)")
    A("    s_and_b32 s5, s5, 7")
    A("    s_lshl_b32 s5, s5, 2")
    A("    s_waitcnt lgkmcnt(0)")
    A("    s_not_b32 s65, s64")
    A("    s_sub_u32 s67, s68, s64")
    A("    s_not_b32 s69, s66")
    A("    v_mov_b32 v1, s5")
    A("    v_mov_b32 v2, 0")
    A("    v_mov_b32 v4, s65")
    A("    v_mov_b32 v5, s66")
    A("    v_mov_b32 v6, s68")
    A("    v_mov_b32 v9, s64")
    A("    v_mov_b32 v10, s67")
    A("    v_mov_b32 v11, s69")
    A("    v_mov_b32 v8, 1")
    A("    s_mov_b64 exec, 1")
    A("    s_add_u32 s70, s64, 3000")
    A("L_pw:")
    A("    s_memrealtime s[72:73]")
    A("    s_waitcnt lgkmcnt(0)")
    A("    s_sub_u32 s71, s72, s64")
    A("    s_cmp_lt_u32 s71, 3000")
    A("    s_cbranch_scc1 L_pw")
    A("    buffer_atomic_umax v4, v1, s[44:47], 0 offen sc1")
    A("    buffer_atomic_umax v5, v1, s[44:47], 0 offen offset:32 sc1")
    A("    buffer_atomic_umax v6, v2, s[44:47], 0 offen offset:64 sc1")
    A("    buffer_atomic_umax v9, v2, s[44:47], 0 offen offset:72 sc1")
    A("    buffer_atomic_umax v10, v2, s[44:47], 0 offen offset:76 sc1")
    A("    buffer_atomic_umax v11, v2, s[44:47], 0 offen offset:80 sc1")
    A("    s_waitcnt vmcnt(0)")
    A("    buffer_atomic_add v8, v2, s[44:47], 0 offen offset:68 sc0 sc1")
    A("    s_waitcnt vmcnt(0)")
    A("    v_readfirstlane_b32 s6, v8")
    A("    s_cmp_lg_u32 s6, 255")
    A("    s_cbranch_scc1 L_end")
    A("    s_mov_b64 exec, -1")
    A("    v_and_b32 v1, 31, v0")
    A("    v_lshlrev_b32 v1, 2, v1")
    A("    buffer_load_dword v4, v1, s[44:47], 0 offen sc1")
    A("    s_waitcnt vmcnt(0)")
    for i in range(21):
        A(f"    v_readlane_b32 s{8+i}, v4, {i}")
    A("    s_nop 3")
    for i in list(range(8)) + [20]:
        A(f"    s_not_b32 s{8+i}, s{8+i}")
    A("    s_min_u32 s36, s8, s9")
    for i in range(2, 8):
        A(f"    s_min_u32 s36, s36, s{8+i}")
    A("    s_max_u32 s25, s8, s9")
    for i in range(2, 8):
        A(f"    s_max_u32 s25, s25, s{8+i}")
    A("    s_add_u32 s27, s27, s36")
    A("    s_min_u32 s29, s16, s17")
    A("    s_max_u32 s30, s16, s17")
    for i in range(2, 8):
        A(f"    s_min_u32 s29, s29, s{16+i}")
        A(f"    s_max_u32 s30, s30, s{16+i}")
    A("    s_mov_b32 s31, s36")
    A(f"    s_sub_u32 s70, s{8+idx}, s36")
    A("    s_min_u32 s70, s70, 5000")
    A(f"    s_mul_i32 s70, s70, {amp}")
    A("    s_add_u32 s70, s70, 6000")
    A("L_amp2:")
    A("    s_memrealtime s[72:73]")
    A("    s_waitcnt lgkmcnt(0)")
    A("    s_sub_u32 s71, s72, s36")
    A("    s_cmp_lt_u32 s71, s70")
    A("    s_cbranch_scc1 L_amp2")

DBGSTAMP = False
AMP = False
def emit_stamps(A, NW, n):
    if DBGSTAMP:
        A("    s_memrealtime s[74:75]")
        A("    s_load_dwordx2 s[60:61], s[0:1], 56")
        A("    s_waitcnt lgkmcnt(0)")
        A("    s_getreg_b32 s5, hwreg(HW_REG_XCC_ID)")
        A("    s_and_b32 s5, s5, 7")
        A("    s_lshl_b32 s5, s5, 2")
        A("    s_not_b32 s64, s64")
        A("    s_mov_b64 exec, 1")
        A("    v_mov_b32 v0, 0")
        A("    v_mov_b32 v1, s5")
        A("    v_mov_b32 v4, s64")
        A("    global_atomic_umax v0, v4, s[60:61] sc1")
        A("    global_atomic_umax v1, v4, s[60:61] offset:32 sc1")
        for i in range(1, 6):
            A(f"    v_mov_b32 v{4+i}, s{64+2*i}")
        A(f"    s_cmp_eq_u32 s3, {NW}")
        A("    s_cbranch_scc1 1f")
        for i in range(1, 6):
            A(f"    global_atomic_umax v0, v{4+i}, s[60:61] offset:{4*i} sc1")
        A("    s_branch 2f")
        A("1:")
        A(f"    global_atomic_umax v0, v5, s[60:61] offset:24 sc1")
        A(f"    global_atomic_umax v0, v9, s[60:61] offset:28 sc1")
        A("2:")
        return

    A("    s_memrealtime s[74:75]")
    A("    s_waitcnt lgkmcnt(0)")
    A(f"    s_mul_i32 s4, s2, {NW+1}")
    A("    s_add_u32 s4, s4, s3")
    A("    s_lshl_b32 s4, s4, 6")
    A("    s_add_u32 s4, s4, 0x100000")
    A("    v_mov_b32 v0, s4")
    A("    s_getreg_b32 s5, hwreg(HW_REG_XCC_ID)")
    A("    s_getreg_b32 s6, hwreg(HW_REG_HW_ID)")
    for i in range(6):
        A(f"    v_mov_b32 v{4+i}, s{64+2*i}")
    A("    v_mov_b32 v10, s5")
    A("    v_mov_b32 v11, s6")
    A("    s_mov_b64 exec, 1")
    A("    global_store_dwordx4 v0, v[4:7], s[60:61]")
    A("    global_store_dwordx4 v0, v[8:11], s[60:61] offset:16")


if __name__ == "__main__":
    ap = argparse.ArgumentParser()
    ap.add_argument("--nw", type=int, default=8)
    ap.add_argument("--no-nt", action="store_true")
    ap.add_argument("--stamps", action="store_true")
    ap.add_argument("--cons", type=int, default=7)
    ap.add_argument("-o", default="-")
    ap.add_argument("--dbgstamps", action="store_true")
    ap.add_argument("--amp", action="store_true")
    ap.add_argument("--probe", type=int, default=None)
    a = ap.parse_args()
    PROBE = a.probe
    AMP = a.amp
    if a.dbgstamps:
        DBGSTAMP = True
        a.stamps = True
    s = gen(NW=a.nw, nt=not a.no_nt, stamps=a.stamps, cons=a.cons)
    if a.o == "-":
        sys.stdout.write(s)
    else:
        open(a.o, "w").write(s)
```

```python
import sys, argparse, struct

NAME = "standalone__tree_speculative_verify_tree_attention_over_candidate_token_tree__decode"
HEADER = """; Kernarg layout for this problem (72 bytes, ptrs only, base s[0:1]):
"""
def f2u(x): return struct.unpack("<I", struct.pack("<f", x))[0]
C_SCALE = (128 ** -0.5) * 1.4426950408889634
LOG2E = 1.4426950408889634
DPPF = "row_mask:0xf bank_mask:0xf"

def gen(o):
    NW = 8; NL = 16
    out = []; A = out.append
    pol = " " + o.pol if o.pol else ""
    cons = o.cons
    stamps = o.stamps
    timing = stamps or o.probe is not None
    def stamp(i):
        if stamps: A(f"    s_memrealtime s[{64+2*i}:{65+2*i}]")
    A(HEADER.rstrip())
    lds_o = 256
    lds_bytes = lds_o + NW * 512
    A(f"; @launch grid=(256,1,1) block=({(NW+1)*64},1,1) lds={lds_bytes}")
    A('.amdgcn_target "amdgcn-amd-amdhsa--gfx950"')
    A(".text"); A(f".globl {NAME}_kernel"); A(".p2align 8"); A(f".type {NAME}_kernel,@function"); A(f"{NAME}_kernel:")
    vQ = 4; vMk = 8; vM = 12; vL = 13; vT = 14; vP = 15; vAcc = 16; vS = 20; vK = 36; vV = vK + 64; vEnd = vV + 64
    A("    s_load_dwordx2 s[24:25], s[0:1], 8        ; K")
    A("    s_load_dwordx2 s[32:33], s[0:1], 0        ; q")
    A("    s_load_dwordx2 s[28:29], s[0:1], 16       ; V")
    if timing: A("    s_memrealtime s[64:65]")
    A("    v_lshrrev_b32 v1, 6, v0")
    A("    s_cmp_ge_u32 s2, 256")
    A("    s_cbranch_scc1 L_end")
    A("    v_readfirstlane_b32 s3, v1")
    A("    v_and_b32 v0, 63, v0                      ; lane")
    if o.prio: A("    s_setprio 3")
    if o.map == "xcd":
        A("    s_and_b32 s22, s2, 7")
        A("    s_lshl_b32 s22, s22, 5")
        A("    s_lshr_b32 s23, s2, 3")
        A("    s_or_b32 s21, s22, s23")
    else:
        A("    s_mov_b32 s21, s2")
    A("    s_mov_b32 s26, 0x2000000")
    A("    s_mov_b32 s27, 0x20000")
    A("    s_mov_b32 s34, 8192")
    A("    s_mov_b32 s35, 0x20000")
    A("    s_lshr_b32 s22, s21, 3                    ; head")
    A(f"    s_cmp_eq_u32 s3, {NW}")
    A("    s_cbranch_scc1 L_helper")
    A("    s_lshl_b32 s4, s21, 17")
    if o.pat == "p5":
        A("    s_lshl_b32 s5, s3, 10"); step = lambda t: t * 8192
    elif o.pat == "a":
        A("    s_and_b32 s5, s3, 3"); A("    s_lshl_b32 s5, s5, 10"); A("    s_lshr_b32 s6, s3, 2"); A("    s_lshl_b32 s6, s6, 16"); A("    s_or_b32 s5, s5, s6"); step = lambda t: t * 4096
    elif o.pat == "b2":
        A("    s_lshl_b32 s5, s3, 12"); step = lambda t: (t & 3) * 1024 + (t >> 2) * 32768
    elif o.pat == "base":
        A("    s_lshl_b32 s5, s3, 14"); step = lambda t: t * 1024
    A("    s_add_u32 s4, s4, s5")
    A("    v_lshl_add_u32 v1, v0, 4, s4")
    A("    v_and_b32 v2, 15, v0")
    A("    s_lshl_b32 s5, s22, 8")
    A("    v_lshl_add_u32 v2, v2, 4, s5")
    A("    s_mov_b32 s30, 0x2000000")
    A("    s_mov_b32 s31, 0x20000")
    A("    s_waitcnt lgkmcnt(0)")
    cur = [None]
    def load(reg, srd, t):
        a = step(t); hi = a & ~4095; lo = a & 4095
        if hi == 0: so = "0"
        else:
            if cur[0] != hi:
                if hi < 32768: A(f"    s_movk_i32 s7, 0x{hi:x}")
                elif cur[0] is not None and abs(hi - cur[0]) < 32768: A(f"    s_addk_i32 s7, 0x{hi-cur[0]:x}")
                else: A(f"    s_mov_b32 s7, 0x{hi:x}")
                cur[0] = hi
            so = "s7"
        off = f" offset:{lo}" if lo else ""
        A(f"    buffer_load_dwordx4 v[{reg}:{reg+3}], v1, {srd}, {so} offen{off}{pol}")
    load(vK, "s[24:27]", 0)
    A(f"    buffer_load_dwordx4 v[{vQ}:{vQ+3}], v2, s[32:35], 0 offen")
    for t in range(1, NL): load(vK + 4*t, "s[24:27]", t)
    if o.prio: A("    s_setprio 0")
    stamp(1)
    NV1 = o.v1n
    for t in range(NV1): load(vV + 4*t, "s[28:31]", t)
    stamp(2)
    A("    v_and_b32 v3, 1, v0")
    A("    v_mov_b32 v2, 0xffff")
    A(f"    v_lshlrev_b32 v3, 4, v3")
    A(f"    v_lshlrev_b32 v2, v3, v2")
    A("    v_bfe_u32 v3, v0, 1, 3")
    for r in range(4):
        A(f"    v_cmp_eq_u32 s[{8+2*r}:{9+2*r}], {r}, v3")
    A(f"    s_lshl_b32 s4, s3, 9")
    A(f"    s_add_u32 s4, s4, {lds_o}")
    for r in range(4):
        A(f"    v_cndmask_b32 v{vMk+r}, 0, v2, s[{8+2*r}:{9+2*r}]")
    A("    v_lshl_add_u32 v2, v0, 3, s4")
    A("    s_lshl_b32 s4, s3, 3")
    A("    v_mov_b32 v3, s4")
    A("    s_mov_b32 s8, 0xcccccccc")
    A("    s_mov_b32 s9, 0xcccccccc")
    A("    s_mov_b32 s10, 0xaaaaaaaa")
    A("    s_mov_b32 s11, 0xaaaaaaaa")
    A(f"    s_mov_b32 s12, 0x{f2u(C_SCALE):08x}")
    for i in range(4):
        A(f"    s_waitcnt vmcnt({NL - (4*i+4) + NV1})")
        for c in range(4):
            for t in range(4):
                k = vK + 16*i + 4*t + c; s = vS + 4*i + t
                if c == 0: A(f"    v_dot2_f32_bf16 v{s}, v{k}, v{vQ}, 0")
                else: A(f"    v_dot2c_f32_bf16 v{s}, v{k}, v{vQ+c}")
        a, b, c, d = (vS + 4*i + j for j in range(4))
        A(f"    v_add_f32_dpp v{a}, v{a}, v{a} row_ror:8 row_mask:0xf bank_mask:0x3")
        A(f"    v_add_f32_dpp v{a}, v{b}, v{b} row_ror:8 row_mask:0xf bank_mask:0xc")
        A(f"    v_add_f32_dpp v{c}, v{c}, v{c} row_ror:8 row_mask:0xf bank_mask:0x3")
        A(f"    v_add_f32_dpp v{c}, v{d}, v{d} row_ror:8 row_mask:0xf bank_mask:0xc")
        A(f"    v_add_f32_dpp v{a}, v{a}, v{a} row_half_mirror row_mask:0xf bank_mask:0x5")
        A("    s_nop 0")
        A(f"    v_add_f32_dpp v{a}, v{c}, v{c} row_half_mirror row_mask:0xf bank_mask:0xa")
    g = [vS + 4*i for i in range(4)]
    x0, y0, x1, y1 = vS+1, vS+2, vS+5, vS+6
    A(f"    v_cndmask_b32 v{y0}, v{g[2]}, v{g[0]}, s[8:9]")
    A(f"    v_cndmask_b32 v{y1}, v{g[3]}, v{g[1]}, s[8:9]")
    A(f"    v_cndmask_b32 v{x0}, v{g[0]}, v{g[2]}, s[8:9]")
    A(f"    v_cndmask_b32 v{x1}, v{g[1]}, v{g[3]}, s[8:9]")
    A(f"    v_add_f32_dpp v{x0}, v{y0}, v{x0} quad_perm:[2,3,0,1] {DPPF}")
    A(f"    v_add_f32_dpp v{x1}, v{y1}, v{x1} quad_perm:[2,3,0,1] {DPPF}")
    A(f"    v_cndmask_b32 v{y0}, v{x1}, v{x0}, s[10:11]")
    A(f"    v_cndmask_b32 v{vP}, v{x0}, v{x1}, s[10:11]")
    A("    s_nop 0")
    A(f"    v_add_f32_dpp v{vP}, v{y0}, v{vP} quad_perm:[1,0,3,2] {DPPF}")
    def xreduce(reg, op, first_src=None):
        src = first_src if first_src is not None else reg
        for step_ in (8, 4, 2, 1):
            A("    s_nop 1")
            A(f"    v_{op}_f32_dpp v{reg}, v{src}, v{src} row_ror:{step_} {DPPF}")
            src = reg
        for sw in ("16", "32"):
            A(f"    v_mov_b32 v{vT}, v{reg}")
            A("    s_nop 1")
            A(f"    v_permlane{sw}_swap_b32 v{reg}, v{vT}")
            A("    s_nop 0")
            A(f"    v_{op}_f32 v{reg}, v{reg}, v{vT}")
    xreduce(vM, "max", vP)
    A(f"    v_mul_f32 v{vM}, s12, v{vM}")
    A(f"    v_fma_f32 v{vP}, v{vP}, s12, -v{vM}")
    A(f"    v_exp_f32 v{vP}, v{vP}")
    A("    s_nop 0")
    A(f"    v_cvt_pk_bf16_f32 v{vP}, v{vP}, v{vP}")
    A(f"    v_and_b32 v{vS}, 0xffff0000, v{vP}")
    xreduce(vL, "add", vS)
    A("    s_mov_b64 exec, 1")
    A(f"    ds_write_b64 v3, v[{vM}:{vL}]")
    A("    s_mov_b64 exec, -1")
    stamp(3)
    if o.mlbar == "pre":
        A("    s_waitcnt lgkmcnt(0)")
        A("    s_barrier")
    for t in range(NV1, NL): load(vV + 4*t, "s[28:31]", t)
    stamp(4)
    if o.mlbar == "post":
        A("    s_waitcnt lgkmcnt(0)")
        A("    s_barrier")
    for t in range(NL):
        n = (t >> 2) | (((t >> 1) & 1) << 2) | ((t & 1) << 3)
        for r in range(4):
            A(f"    v_and_b32_dpp v{vK+4*t+r}, v{vP}, v{vMk+r} row_newbcast:{n} {DPPF}")
    stamp(5)
    for t in range(NL):
        A(f"    s_waitcnt vmcnt({NL-1-t})")
        c = "0" if t == 0 else f"v[{vAcc}:{vAcc+3}]"
        A(f"    v_mfma_f32_16x16x32_bf16 v[{vAcc}:{vAcc+3}], v[{vK+4*t}:{vK+4*t+3}], v[{vV+4*t}:{vV+4*t+3}], {c}")
    stamp(6)
    A("    s_nop 7")
    A(f"    v_permlane32_swap_b32 v{vAcc}, v{vAcc+2}")
    A(f"    v_permlane32_swap_b32 v{vAcc+1}, v{vAcc+3}")
    A("    s_nop 0")
    A(f"    ds_write_b64 v2, v[{vAcc}:{vAcc+1}]")
    A("    s_waitcnt lgkmcnt(0)")
    A("    s_barrier")
    if stamps: emit_stamps(A, NW)
    A("    s_endpgm")

    OFF_A = 8192; OFF_ML = 16384; OFF_E = 16384 + 2048
    A("L_helper:")
    A("    s_load_dwordx2 s[40:41], s[0:1], 64       ; ws")
    A("    s_load_dwordx2 s[48:49], s[0:1], 48       ; out")
    A("    s_load_dwordx2 s[52:53], s[0:1], 24       ; k_tree")
    A("    s_load_dwordx2 s[56:57], s[0:1], 32       ; v_tree")
    A("    s_load_dwordx2 s[88:89], s[0:1], 40       ; mask")
    if o.probe is not None:
        A("    s_load_dwordx2 s[44:45], s[0:1], 56       ; dbg")
        A("    s_mov_b32 s46, 256")
        A("    s_mov_b32 s47, 0x20000")
    if stamps:
        for i in range(1, 7): A(f"    s_mov_b64 s[{64+2*i}:{65+2*i}], 0")
    A("    s_mov_b32 s42, 0x100000")
    A("    s_mov_b32 s43, 0x20000")
    A("    s_mov_b32 s50, 8192")
    A("    s_mov_b32 s51, 0x20000")
    A("    s_mov_b32 s54, 8192")
    A("    s_mov_b32 s55, 0x20000")
    A("    s_mov_b32 s58, 8192")
    A("    s_mov_b32 s59, 0x20000")
    A("    s_and_b32 s23, s21, 7                     ; split")
    A("    s_lshl_b32 s4, s22, 15                    ; head region base")
    A(f"    s_add_u32 s6, s4, {OFF_E}")
    A("    s_lshl_b32 s5, s23, 10")
    A("    s_add_u32 s5, s5, s4                      ; own B slot base")
    A("    v_lshlrev_b32 v1, 4, v0                   ; lane*16")
    A("    v_add_u32 v2, s5, v1")
    A("    v_and_b32 v7, 15, v0")
    A("    v_lshlrev_b32 v7, 2, v7")
    A("    v_bfe_u32 v8, v0, 4, 1")
    A("    v_lshl_add_u32 v7, v8, 1, v7")
    A("    v_lshrrev_b32 v8, 5, v0")
    A("    v_add_u32 v7, v7, v8")
    A("    s_lshl_b32 s7, s22, 8")
    A("    v_lshl_add_u32 v7, v7, 2, s7")
    A("    v_mov_b32 v8, 0")
    A("    v_mov_b32 v9, s6")
    if o.fast:
        for i in range(12, 20, 2): A(f"    s_mov_b64 s[{i}:{i+1}], 0")
    A("    s_getreg_b32 s20, hwreg(HW_REG_XCC_ID)")
    A("    s_waitcnt lgkmcnt(0)")
    A("    s_load_dwordx2 s[36:37], s[40:41], s6     ; epoch left by the previous launch (any value)")
    A(f"    s_cmp_lg_u32 s23, {cons}")
    A("    s_cbranch_scc1 L_h1")
    A("    buffer_load_dword v10, v7, s[32:35], 0 offen   ; q pair")
    A("    buffer_load_dword v11, v7, s[52:55], 0 offen")
    A("    buffer_load_dword v12, v7, s[56:59], 0 offen")
    A("    global_load_ushort v13, v8, s[88:89]       ; mask")
    A("    s_waitcnt vmcnt(0)")
    A("    v_dot2_f32_bf16 v10, v10, v11, 0")
    A("    v_lshlrev_b32 v13, 16, v13                ; mask f32")
    A("    v_sub_f32 v13, 1.0, v13")
    A("    s_nop 1")
    for step_ in (8, 4, 2, 1):
        A(f"    v_add_f32_dpp v10, v10, v10 row_ror:{step_} {DPPF}")
        A("    s_nop 1")
    for sw in ("16", "32"):
        A("    v_mov_b32 v11, v10")
        A("    s_nop 1")
        A(f"    v_permlane{sw}_swap_b32 v10, v11")
        A("    s_nop 0")
        A("    v_add_f32 v10, v10, v11")
    A(f"    v_mul_f32 v10, 0x{f2u(C_SCALE):08x}, v10")
    A(f"    v_mul_f32 v13, 0x{f2u(-1e9*LOG2E):08x}, v13")
    A("    v_add_f32 v10, v10, v13")
    A("    v_lshlrev_b32 v11, 16, v12")
    A("    v_and_b32 v12, 0xffff0000, v12")
    A("L_h1:")
    A(f"    v_and_b32 v14, {NW-1}, v0")
    A("    v_lshlrev_b32 v14, 3, v14")
    A("    s_lshl_b32 s7, s23, 7")
    A("    s_add_u32 s7, s7, s4")
    A(f"    s_add_u32 s7, s7, {OFF_ML}")
    A("    v_add_u32 v15, s7, v1")
    A("    s_waitcnt lgkmcnt(0)")
    A("    s_add_u32 s36, s36, 1")
    A("    s_addc_u32 s37, s37, 0")
    A("    v_mov_b32 v22, s36")
    A("    v_mov_b32 v23, s37")
    A("    s_barrier")
    stamp(1)
    A("    ds_read_b64 v[16:17], v14                 ; (m_w, l_w)")
    A("    s_waitcnt lgkmcnt(0)")
    src = 16
    for step_ in (4, 2, 1):
        if src != 16: A("    s_nop 1")
        A(f"    v_max_f32_dpp v20, v{src}, v{src} row_ror:{step_} {DPPF}")
        src = 20
    A("    v_sub_f32 v16, v16, v20")
    A("    v_exp_f32 v16, v16                        ; f_w")
    A("    s_nop 0")
    A("    v_mul_f32 v21, v16, v17")
    for step_ in (4, 2, 1):
        A("    s_nop 1")
        A(f"    v_add_f32_dpp v21, v21, v21 row_ror:{step_} {DPPF}")
    if o.fast:
        A("    v_writelane_b32 v20, s20, 1")
        A("    s_mov_b64 exec, 3")
    else:
        A("    s_mov_b64 exec, 1")
    A("    buffer_store_dwordx4 v[20:23], v15, s[40:43], 0 offen sc1")
    A("    s_mov_b64 exec, -1")
    A(f"    s_cmp_lg_u32 s23, {cons}")
    A("    s_cbranch_scc1 L_h2")
    A("    v_and_b32 v15, 7, v0")
    A("    v_lshlrev_b32 v15, 7, v15")
    if o.fast:
        A("    v_and_b32 v14, 8, v0")
        A("    v_lshl_add_u32 v15, v14, 1, v15")
    A(f"    s_add_u32 s7, s4, {OFF_ML}")
    A("    s_mov_b32 s92, 0x40000")
    A("L_poll_ml:")
    A("    buffer_load_dwordx4 v[24:27], v15, s[40:43], s7 offen sc1")
    A("    s_waitcnt vmcnt(0)")
    A("    v_cmp_ne_u64 vcc, s[36:37], v[26:27]")
    A("    s_cbranch_vccz L_ml_ok")
    A("    s_sleep 1")
    A("    s_sub_u32 s92, s92, 1")
    A("    s_cbranch_scc0 L_poll_ml")
    A("L_ml_ok:")
    stamp(2)
    others = [s for s in range(8) if s != cons]
    if o.fast:
        for s in others:
            A(f"    v_readlane_b32 s{72+s if False else 12+s}, v24, {8+s}")
        A("    v_mov_b32_dpp v24, v24 row_shr:8 row_mask:0xf bank_mask:0xc")
        A("    v_mov_b32_dpp v25, v25 row_shr:8 row_mask:0xf bank_mask:0xc")
        for s in others:
            A(f"    s_cmp_eq_u32 s{12+s}, s20")
            A(f"    s_cselect_b32 s{12+s}, {OFF_A}, 0")
            A(f"    s_addk_i32 s{12+s}, {1024*s}")
    A("    v_max_f32 v28, v24, v10")
    for step_ in (4, 2, 1):
        A("    s_nop 1")
        A(f"    v_max_f32_dpp v28, v28, v28 row_ror:{step_} {DPPF}")
    A("    v_sub_f32 v24, v24, v28")
    A("    v_sub_f32 v10, v10, v28")
    A("    v_exp_f32 v24, v24                        ; w_s")
    A("    v_exp_f32 v10, v10                        ; w_tree")
    A("    s_nop 0")
    A("    v_mul_f32 v25, v24, v25")
    for step_ in (4, 2, 1):
        A("    s_nop 1")
        A(f"    v_add_f32_dpp v25, v25, v25 row_ror:{step_} {DPPF}")
    A("    v_add_f32 v25, v25, v10                   ; L")
    A("    v_rcp_f32 v25, v25")
    A("    s_nop 0")
    A("    v_mul_f32 v24, v24, v25                   ; W_s")
    A("    v_mul_f32 v10, v10, v25                   ; W_tree")
    A("    v_mul_f32 v11, v11, v10")
    A("    v_mul_f32 v12, v12, v10")
    for s in range(8):
        A(f"    v_readlane_b32 s{80+s}, v24, {s}")
    A("    v_add_u32 v15, s4, v1")
    A("    s_nop 0")
    A(f"    v_mul_f32 v16, s{80+cons}, v16")
    A("L_h2:")
    A("    s_nop 1")
    for w in range(NW):
        A(f"    v_readlane_b32 s{96+w-72 if False else 24+w}, v16, {w}")
    A("    v_lshlrev_b32 v14, 3, v0")
    A("    s_barrier")
    if o.probe is not None: A("    s_memrealtime s[66:67]")
    stamp(3)
    for w in range(NW):
        A(f"    ds_read_b64 v[{32+2*w}:{33+2*w}], v14 offset:{lds_o+512*w}")
    for w in range(NW):
        A(f"    s_waitcnt lgkmcnt({NW-1-w})")
        if w == 0:
            A(f"    v_mul_f32 v20, s24, v32")
            A(f"    v_mul_f32 v21, s24, v33")
        else:
            A(f"    v_fmac_f32 v20, s{24+w}, v{32+2*w}")
            A(f"    v_fmac_f32 v21, s{24+w}, v{33+2*w}")
    A(f"    s_cmp_eq_u32 s23, {cons}")
    A("    s_cbranch_scc1 L_final")
    if o.fast:
        A(f"    s_movk_i32 s7, {OFF_A}")
        A("    buffer_store_dwordx4 v[20:23], v2, s[40:43], s7 offen")
    A("    buffer_store_dwordx4 v[20:23], v2, s[40:43], 0 offen sc1")
    if stamps:
        stamp(4)
        emit_stamps(A, NW)
    if o.probe is not None: A("    s_branch L_probe")
    A("    s_endpgm")
    A("L_final:")
    A("    v_add_f32 v11, v11, v20")
    A("    v_add_f32 v12, v12, v21")
    stamp(4)
    A("    s_mov_b32 s92, 0x40000")
    if not o.fast: A("    s_movk_i32 s7, 4096")
    A("L_poll_o:")
    for j, s in enumerate(others):
        if o.fast:
            A(f"    buffer_load_dwordx4 v[{32+4*j}:{35+4*j}], v15, s[40:43], s{12+s} offen sc1")
        else:
            off = 1024 * s; so = "0"
            if off >= 4096: so = "s7"; off -= 4096
            A(f"    buffer_load_dwordx4 v[{32+4*j}:{35+4*j}], v15, s[40:43], {so} offen offset:{off} sc1")
    for j, s in enumerate(others):
        A(f"    s_waitcnt vmcnt({6-j})")
        A(f"    v_cmp_ne_u64 s[{24+2*(j&1) if j else 38}:{25+2*(j&1) if j else 39}], s[36:37], v[{34+4*j}:{35+4*j}]")
        if j == 0:
            A(f"    v_fma_f32 v20, s{80+s}, v{32+4*j}, v11")
            A(f"    v_fma_f32 v21, s{80+s}, v{33+4*j}, v12")
        else:
            A(f"    v_fmac_f32 v20, s{80+s}, v{32+4*j}")
            A(f"    v_fmac_f32 v21, s{80+s}, v{33+4*j}")
            if j == 6: A("    v_cvt_pk_bf16_f32 v20, v20, v21")
            A(f"    s_or_b64 s[38:39], s[38:39], s[{24+2*(j&1)}:{25+2*(j&1)}]")
    A("    s_cbranch_scc0 L_o_ok")
    A("    s_sub_u32 s92, s92, 1")
    A("    s_cbranch_scc0 L_poll_o")
    A("L_o_ok:")
    osc = " sc1" if o.outsc1 else ""
    A(f"    buffer_store_dword v20, v7, s[48:51], 0 offen{osc}")
    A("    s_mov_b64 exec, 1")
    A(f"    buffer_store_dwordx2 v[22:23], v9, s[40:43], 0 offen{osc}")
    if stamps:
        stamp(5)
        emit_stamps(A, NW)
    if o.probe is not None: emit_probe(A, o.probe)
    A("L_end:")
    A("    s_endpgm")
    nv = max(vEnd, 64)
    A('.section .rodata,"a"'); A(".p2align 6"); A(f".amdhsa_kernel {NAME}_kernel")
    A(f"  .amdhsa_next_free_vgpr {nv}"); A("  .amdhsa_next_free_sgpr 96"); A(f"  .amdhsa_accum_offset {(nv+3)//4*4}")
    A("  .amdhsa_group_segment_fixed_size 0"); A("  .amdhsa_kernarg_size 72"); A("  .amdhsa_user_sgpr_count 2")
    A("  .amdhsa_user_sgpr_kernarg_segment_ptr 1"); A("  .amdhsa_system_sgpr_workgroup_id_x 1"); A(".end_amdhsa_kernel")
    return "\n".join(out) + "\n"


def emit_stamps(A, NW):
    A("    s_memrealtime s[78:79]")
    A("    s_load_dwordx2 s[60:61], s[0:1], 64")
    A("    s_waitcnt lgkmcnt(0)")
    A(f"    s_mul_i32 s4, s2, {NW+1}")
    A("    s_add_u32 s4, s4, s3")
    A("    s_lshl_b32 s4, s4, 6")
    A("    s_add_u32 s4, s4, 0x100000")
    A("    s_mov_b64 exec, -1")
    A("    v_mov_b32 v0, s4")
    A("    s_getreg_b32 s5, hwreg(HW_REG_XCC_ID)")
    A("    s_getreg_b32 s6, hwreg(HW_REG_HW_ID)")
    for i in range(8): A(f"    v_mov_b32 v{40+i}, s{64+2*i}")
    A("    v_mov_b32 v48, s5"); A("    v_mov_b32 v49, s6")
    A("1:")
    A("    s_sleep 32")
    A("    s_memrealtime s[62:63]")
    A("    s_waitcnt lgkmcnt(0)")
    A("    s_sub_u32 s62, s62, s64")
    A("    s_cmp_lt_u32 s62, 2000")
    A("    s_cbranch_scc1 1b")
    A("    s_mov_b64 exec, 1")
    A("    global_store_dwordx4 v0, v[40:43], s[60:61]")
    A("    global_store_dwordx4 v0, v[44:47], s[60:61] offset:16")
    A("    global_store_dwordx2 v0, v[48:49], s[60:61] offset:32")

from gen import emit_probe

if __name__ == "__main__":
    ap = argparse.ArgumentParser()
    ap.add_argument("--pol", default="nt")
    ap.add_argument("--stamps", action="store_true")
    ap.add_argument("--cons", type=int, default=7)
    ap.add_argument("--pat", default="p5")
    ap.add_argument("--map", default="xcd")
    ap.add_argument("--v1n", type=int, default=8)
    ap.add_argument("--mlbar", default="post")
    ap.add_argument("--prio", type=int, default=1)
    ap.add_argument("--fast", type=int, default=0)
    ap.add_argument("--outsc1", type=int, default=0)
    ap.add_argument("--probe", type=int, default=None)
    ap.add_argument("-o", default="-")
    a = ap.parse_args()
    s = gen(a)
    if a.o == "-": sys.stdout.write(s)
    else: open(a.o, "w").write(s)
```

```python
import sys, argparse, struct

NAME = "standalone__tree_speculative_verify_tree_attention_over_candidate_token_tree__decode"
HEADER = """; Kernarg layout for this problem (72 bytes, ptrs only, base s[0:1]):
"""
def f2u(x): return struct.unpack("<I", struct.pack("<f", x))[0]
C_SCALE = (128 ** -0.5) * 1.4426950408889634
LOG2E = 1.4426950408889634
DPPF = "row_mask:0xf bank_mask:0xf"

def gen(o):
    NW = 8; NL = 16
    out = []; A = out.append
    pol = " " + o.pol if o.pol else ""
    cons = o.cons
    stamps = o.stamps
    timing = stamps or o.probe is not None or o.lprobe is not None
    def lp(kind):
        if o.lprobe == kind: A("    s_memrealtime s[66:67]")
    def stampf(i): A(f"    s_memrealtime s[{64+2*i}:{65+2*i}]")
    inw = [True]
    def stamp(i):
        if o.fine and inw[0]:
            if stamps and i == 1: stampf(6)
            return
        if stamps: A(f"    s_memrealtime s[{64+2*i}:{65+2*i}]")
    A(HEADER.rstrip())
    lds_o = 256
    lds_bytes = lds_o + NW * 512
    A(f"; @launch grid=(256,1,1) block=({(NW+1)*64},1,1) lds={lds_bytes}")
    A('.amdgcn_target "amdgcn-amd-amdhsa--gfx950"')
    A(".text"); A(f".globl {NAME}_kernel"); A(".p2align 8"); A(f".type {NAME}_kernel,@function"); A(f"{NAME}_kernel:")
    vQ = 4; vMk = 8; vM = 12; vL = 13; vT = 14; vP = 15; vAcc = 16; vS = 20; vK = 36; vV = vK + 64; vEnd = vV + 64
    A("    s_load_dwordx2 s[24:25], s[0:1], 8        ; K")
    A("    s_load_dwordx2 s[32:33], s[0:1], 0        ; q")
    A("    s_load_dwordx2 s[28:29], s[0:1], 16       ; V")
    if timing: A("    s_memrealtime s[64:65]")
    if o.lprobe == "jump":
        for i in range(6):
            A(f"    s_branch LJ{i}"); A("    .p2align 9"); A(f"LJ{i}:")
        lp("jump")
    if o.lprobe == "zero": lp("zero")
    A("    v_lshrrev_b32 v1, 6, v0")
    A("    s_cmp_ge_u32 s2, 256")
    A("    s_cbranch_scc1 L_end")
    A("    v_readfirstlane_b32 s3, v1")
    A("    v_and_b32 v0, 63, v0                      ; lane")
    if o.prio: A("    s_setprio 3")
    if o.map == "xcd":
        A("    s_and_b32 s22, s2, 7")
        A("    s_lshl_b32 s22, s22, 5")
        A("    s_lshr_b32 s23, s2, 3")
        A("    s_or_b32 s21, s22, s23")
    else:
        A("    s_mov_b32 s21, s2")
    A("    s_mov_b32 s26, 0x2000000")
    A("    s_mov_b32 s27, 0x20000")
    A("    s_mov_b32 s34, 8192")
    A("    s_mov_b32 s35, 0x20000")
    A("    s_lshr_b32 s22, s21, 3                    ; head")
    A(f"    s_cmp_eq_u32 s3, {NW}")
    A("    s_cbranch_scc1 L_helper")
    A("    s_lshl_b32 s4, s21, 17")
    if o.pat == "p5":
        A("    s_lshl_b32 s5, s3, 10"); step = lambda t: t * 8192
    elif o.pat == "a":
        A("    s_and_b32 s5, s3, 3"); A("    s_lshl_b32 s5, s5, 10"); A("    s_lshr_b32 s6, s3, 2"); A("    s_lshl_b32 s6, s6, 16"); A("    s_or_b32 s5, s5, s6"); step = lambda t: t * 4096
    elif o.pat == "b2":
        A("    s_lshl_b32 s5, s3, 12"); step = lambda t: (t & 3) * 1024 + (t >> 2) * 32768
    elif o.pat == "base":
        A("    s_lshl_b32 s5, s3, 14"); step = lambda t: t * 1024
    A("    s_add_u32 s4, s4, s5")
    A("    v_lshl_add_u32 v1, v0, 4, s4")
    A("    v_and_b32 v2, 15, v0")
    A("    s_lshl_b32 s5, s22, 8")
    A("    v_lshl_add_u32 v2, v2, 4, s5")
    A("    s_mov_b32 s30, 0x2000000")
    A("    s_mov_b32 s31, 0x20000")
    A("    s_waitcnt lgkmcnt(0)")
    lp("karg")
    if stamps and o.fine: stampf(1)
    cur = [None]
    def load(reg, srd, t):
        a = step(t); hi = a & ~4095; lo = a & 4095
        if hi == 0: so = "0"
        else:
            if cur[0] != hi:
                if hi < 32768: A(f"    s_movk_i32 s7, 0x{hi:x}")
                elif cur[0] is not None and abs(hi - cur[0]) < 32768: A(f"    s_addk_i32 s7, 0x{hi-cur[0]:x}")
                else: A(f"    s_mov_b32 s7, 0x{hi:x}")
                cur[0] = hi
            so = "s7"
        off = f" offset:{lo}" if lo else ""
        A(f"    buffer_load_dwordx4 v[{reg}:{reg+3}], v1, {srd}, {so} offen{off}{pol}")
    for t in range(0, NL):
        if t == o.qpos: A(f"    buffer_load_dwordx4 v[{vQ}:{vQ+3}], v2, s[32:35], 0 offen")
        load(vK + 4*t, "s[24:27]", t)
        if t == 0 and o.lprobe == "first":
            A("    s_cmp_lg_u32 s3, 0"); A("    s_cbranch_scc1 1f"); A("    s_waitcnt vmcnt(0)"); lp("first"); A("1:")
        if t == 3: lp("k4")
        if stamps and o.fine and t in (0, 3, 7, 11): stampf(2 + (t+1)//4)
    if o.qpos >= NL: A(f"    buffer_load_dwordx4 v[{vQ}:{vQ+3}], v2, s[32:35], 0 offen")
    lp("kiss")
    if o.prio: A("    s_setprio 0")
    stamp(1)
    NV1 = o.v1n
    for t in range(NV1): load(vV + 4*t, "s[28:31]", t)
    stamp(2)
    A("    v_and_b32 v3, 1, v0")
    A("    v_mov_b32 v2, 0xffff")
    A(f"    v_lshlrev_b32 v3, 4, v3")
    A(f"    v_lshlrev_b32 v2, v3, v2")
    A("    v_bfe_u32 v3, v0, 1, 3")
    for r in range(4):
        A(f"    v_cmp_eq_u32 s[{8+2*r}:{9+2*r}], {r}, v3")
    A(f"    s_lshl_b32 s4, s3, 9")
    A(f"    s_add_u32 s4, s4, {lds_o}")
    for r in range(4):
        A(f"    v_cndmask_b32 v{vMk+r}, 0, v2, s[{8+2*r}:{9+2*r}]")
    A("    v_lshl_add_u32 v2, v0, 3, s4")
    A("    s_lshl_b32 s4, s3, 3")
    A("    v_mov_b32 v3, s4")
    A("    s_mov_b32 s8, 0xcccccccc")
    A("    s_mov_b32 s9, 0xcccccccc")
    A("    s_mov_b32 s10, 0xaaaaaaaa")
    A("    s_mov_b32 s11, 0xaaaaaaaa")
    A(f"    s_mov_b32 s12, 0x{f2u(C_SCALE):08x}")
    for i in range(4):
        A(f"    s_waitcnt vmcnt({min(NL - (4*i+4), NL - o.qpos if o.qpos > 4*i+4 else 99) + NV1})")
        if i == 0: lp("qk0")
        for c in range(4):
            for t in range(4):
                k = vK + 16*i + 4*t + c; s = vS + 4*i + t
                if c == 0: A(f"    v_dot2_f32_bf16 v{s}, v{k}, v{vQ}, 0")
                else: A(f"    v_dot2c_f32_bf16 v{s}, v{k}, v{vQ+c}")
        a, b, c, d = (vS + 4*i + j for j in range(4))
        A(f"    v_add_f32_dpp v{a}, v{a}, v{a} row_ror:8 row_mask:0xf bank_mask:0x3")
        A(f"    v_add_f32_dpp v{a}, v{b}, v{b} row_ror:8 row_mask:0xf bank_mask:0xc")
        A(f"    v_add_f32_dpp v{c}, v{c}, v{c} row_ror:8 row_mask:0xf bank_mask:0x3")
        A(f"    v_add_f32_dpp v{c}, v{d}, v{d} row_ror:8 row_mask:0xf bank_mask:0xc")
        A(f"    v_add_f32_dpp v{a}, v{a}, v{a} row_half_mirror row_mask:0xf bank_mask:0x5")
        A("    s_nop 0")
        A(f"    v_add_f32_dpp v{a}, v{c}, v{c} row_half_mirror row_mask:0xf bank_mask:0xa")
    g = [vS + 4*i for i in range(4)]
    x0, y0, x1, y1 = vS+1, vS+2, vS+5, vS+6
    A(f"    v_cndmask_b32 v{y0}, v{g[2]}, v{g[0]}, s[8:9]")
    A(f"    v_cndmask_b32 v{y1}, v{g[3]}, v{g[1]}, s[8:9]")
    A(f"    v_cndmask_b32 v{x0}, v{g[0]}, v{g[2]}, s[8:9]")
    A(f"    v_cndmask_b32 v{x1}, v{g[1]}, v{g[3]}, s[8:9]")
    A(f"    v_add_f32_dpp v{x0}, v{y0}, v{x0} quad_perm:[2,3,0,1] {DPPF}")
    A(f"    v_add_f32_dpp v{x1}, v{y1}, v{x1} quad_perm:[2,3,0,1] {DPPF}")
    A(f"    v_cndmask_b32 v{y0}, v{x1}, v{x0}, s[10:11]")
    A(f"    v_cndmask_b32 v{vP}, v{x0}, v{x1}, s[10:11]")
    A("    s_nop 0")
    A(f"    v_add_f32_dpp v{vP}, v{y0}, v{vP} quad_perm:[1,0,3,2] {DPPF}")
    def xreduce(reg, op, first_src=None):
        src = first_src if first_src is not None else reg
        for step_ in (8, 4, 2, 1):
            A("    s_nop 1")
            A(f"    v_{op}_f32_dpp v{reg}, v{src}, v{src} row_ror:{step_} {DPPF}")
            src = reg
        for sw in ("16", "32"):
            A(f"    v_mov_b32 v{vT}, v{reg}")
            A("    s_nop 1")
            A(f"    v_permlane{sw}_swap_b32 v{reg}, v{vT}")
            A("    s_nop 0")
            A(f"    v_{op}_f32 v{reg}, v{reg}, v{vT}")
    xreduce(vM, "max", vP)
    A(f"    v_mul_f32 v{vM}, s12, v{vM}")
    A(f"    v_fma_f32 v{vP}, v{vP}, s12, -v{vM}")
    A(f"    v_exp_f32 v{vP}, v{vP}")
    A("    s_nop 0")
    A(f"    v_cvt_pk_bf16_f32 v{vP}, v{vP}, v{vP}")
    A(f"    v_and_b32 v{vS}, 0xffff0000, v{vP}")
    xreduce(vL, "add", vS)
    A("    s_mov_b64 exec, 1")
    A(f"    ds_write_b64 v3, v[{vM}:{vL}]")
    A("    s_mov_b64 exec, -1")
    stamp(3)
    if o.mlbar == "pre":
        A("    s_waitcnt lgkmcnt(0)")
        A("    s_barrier")
    for t in range(NV1, NL): load(vV + 4*t, "s[28:31]", t)
    stamp(4)
    if o.mlbar == "post":
        A("    s_waitcnt lgkmcnt(0)")
        A("    s_barrier")
    for t in range(NL):
        n = (t >> 2) | (((t >> 1) & 1) << 2) | ((t & 1) << 3)
        for r in range(4):
            A(f"    v_and_b32_dpp v{vK+4*t+r}, v{vP}, v{vMk+r} row_newbcast:{n} {DPPF}")
    stamp(5)
    for t in range(NL):
        A(f"    s_waitcnt vmcnt({NL-1-t})")
        c = "0" if t == 0 else f"v[{vAcc}:{vAcc+3}]"
        A(f"    v_mfma_f32_16x16x32_bf16 v[{vAcc}:{vAcc+3}], v[{vK+4*t}:{vK+4*t+3}], v[{vV+4*t}:{vV+4*t+3}], {c}")
    stamp(6)
    A("    s_nop 7")
    A(f"    v_permlane32_swap_b32 v{vAcc}, v{vAcc+2}")
    A(f"    v_permlane32_swap_b32 v{vAcc+1}, v{vAcc+3}")
    A("    s_nop 0")
    A(f"    ds_write_b64 v2, v[{vAcc}:{vAcc+1}]")
    A("    s_waitcnt lgkmcnt(0)")
    A("    s_barrier")
    if stamps: emit_stamps(A, NW)
    if o.lprobe is not None:
        A(f"    s_cmp_lg_u32 s3, {o.lwave}")
        A("    s_cbranch_scc1 L_end")
        if o.lwg >= 0:
            A(f"    s_cmp_lg_u32 s2, {o.lwg}")
            A("    s_cbranch_scc1 L_end")
        A("    s_sub_u32 s70, s66, s64")
        A("    s_min_u32 s70, s70, 2000")
        A("    s_mul_i32 s70, s70, 20")
        A("    s_add_u32 s70, s70, 6000")
        A("L_amp3:")
        A("    s_memrealtime s[72:73]")
        A("    s_waitcnt lgkmcnt(0)")
        A("    s_sub_u32 s71, s72, s64")
        A("    s_cmp_lt_u32 s71, s70")
        A("    s_cbranch_scc1 L_amp3")
    A("    s_endpgm")
    inw[0] = False

    OFF_A = 8192; OFF_ML = 16384; OFF_E = 16384 + 2048
    A("L_helper:")
    A("    s_load_dwordx2 s[40:41], s[0:1], 64       ; ws")
    A("    s_load_dwordx2 s[48:49], s[0:1], 48       ; out")
    A("    s_load_dwordx2 s[52:53], s[0:1], 24       ; k_tree")
    A("    s_load_dwordx2 s[56:57], s[0:1], 32       ; v_tree")
    A("    s_load_dwordx2 s[88:89], s[0:1], 40       ; mask")
    if o.probe is not None:
        A("    s_load_dwordx2 s[44:45], s[0:1], 56       ; dbg")
        A("    s_mov_b32 s46, 256")
        A("    s_mov_b32 s47, 0x20000")
    if stamps:
        for i in range(1, 7): A(f"    s_mov_b64 s[{64+2*i}:{65+2*i}], 0")
    A("    s_mov_b32 s42, 0x100000")
    A("    s_mov_b32 s43, 0x20000")
    A("    s_mov_b32 s50, 8192")
    A("    s_mov_b32 s51, 0x20000")
    A("    s_mov_b32 s54, 8192")
    A("    s_mov_b32 s55, 0x20000")
    A("    s_mov_b32 s58, 8192")
    A("    s_mov_b32 s59, 0x20000")
    A("    s_and_b32 s23, s21, 7                     ; split")
    A("    s_lshl_b32 s4, s22, 15                    ; head region base")
    A(f"    s_add_u32 s6, s4, {OFF_E}")
    A("    s_lshl_b32 s5, s23, 10")
    A("    s_add_u32 s5, s5, s4                      ; own B slot base")
    A("    v_lshlrev_b32 v1, 4, v0                   ; lane*16")
    A("    v_add_u32 v2, s5, v1")
    A("    v_and_b32 v7, 15, v0")
    A("    v_lshlrev_b32 v7, 2, v7")
    A("    v_bfe_u32 v8, v0, 4, 1")
    A("    v_lshl_add_u32 v7, v8, 1, v7")
    A("    v_lshrrev_b32 v8, 5, v0")
    A("    v_add_u32 v7, v7, v8")
    A("    s_lshl_b32 s7, s22, 8")
    A("    v_lshl_add_u32 v7, v7, 2, s7")
    A("    v_mov_b32 v8, 0")
    A("    v_mov_b32 v9, s6")
    if o.fast:
        for i in range(12, 20, 2): A(f"    s_mov_b64 s[{i}:{i+1}], 0")
    A("    s_getreg_b32 s20, hwreg(HW_REG_XCC_ID)")
    A("    s_waitcnt lgkmcnt(0)")
    A("    s_load_dwordx2 s[36:37], s[40:41], s6     ; epoch left by the previous launch (any value)")
    A(f"    s_cmp_lg_u32 s23, {cons}")
    A("    s_cbranch_scc1 L_h1")
    A("    buffer_load_dword v10, v7, s[32:35], 0 offen   ; q pair")
    A("    buffer_load_dword v11, v7, s[52:55], 0 offen")
    A("    buffer_load_dword v12, v7, s[56:59], 0 offen")
    A("    global_load_ushort v13, v8, s[88:89]       ; mask")
    A("    s_waitcnt vmcnt(0)")
    A("    v_dot2_f32_bf16 v10, v10, v11, 0")
    A("    v_lshlrev_b32 v13, 16, v13                ; mask f32")
    A("    v_sub_f32 v13, 1.0, v13")
    A("    s_nop 1")
    for step_ in (8, 4, 2, 1):
        A(f"    v_add_f32_dpp v10, v10, v10 row_ror:{step_} {DPPF}")
        A("    s_nop 1")
    for sw in ("16", "32"):
        A("    v_mov_b32 v11, v10")
        A("    s_nop 1")
        A(f"    v_permlane{sw}_swap_b32 v10, v11")
        A("    s_nop 0")
        A("    v_add_f32 v10, v10, v11")
    A(f"    v_mul_f32 v10, 0x{f2u(C_SCALE):08x}, v10")
    A(f"    v_mul_f32 v13, 0x{f2u(-1e9*LOG2E):08x}, v13")
    A("    v_add_f32 v10, v10, v13")
    A("    v_lshlrev_b32 v11, 16, v12")
    A("    v_and_b32 v12, 0xffff0000, v12")
    A("L_h1:")
    A(f"    v_and_b32 v14, {NW-1}, v0")
    A("    v_lshlrev_b32 v14, 3, v14")
    A("    s_lshl_b32 s7, s23, 7")
    A("    s_add_u32 s7, s7, s4")
    A(f"    s_add_u32 s7, s7, {OFF_ML}")
    A("    v_add_u32 v15, s7, v1")
    A("    s_waitcnt lgkmcnt(0)")
    A("    s_add_u32 s36, s36, 1")
    A("    s_addc_u32 s37, s37, 0")
    A("    v_mov_b32 v22, s36")
    A("    v_mov_b32 v23, s37")
    A("    s_barrier")
    stamp(1)
    A("    ds_read_b64 v[16:17], v14                 ; (m_w, l_w)")
    A("    s_waitcnt lgkmcnt(0)")
    src = 16
    for step_ in (4, 2, 1):
        if src != 16: A("    s_nop 1")
        A(f"    v_max_f32_dpp v20, v{src}, v{src} row_ror:{step_} {DPPF}")
        src = 20
    A("    v_sub_f32 v16, v16, v20")
    A("    v_exp_f32 v16, v16                        ; f_w")
    A("    s_nop 0")
    A("    v_mul_f32 v21, v16, v17")
    for step_ in (4, 2, 1):
        A("    s_nop 1")
        A(f"    v_add_f32_dpp v21, v21, v21 row_ror:{step_} {DPPF}")
    if o.fast:
        A("    v_writelane_b32 v20, s20, 1")
        A("    s_mov_b64 exec, 3")
    else:
        A("    s_mov_b64 exec, 1")
    A("    buffer_store_dwordx4 v[20:23], v15, s[40:43], 0 offen sc1")
    A("    s_mov_b64 exec, -1")
    A(f"    s_cmp_lg_u32 s23, {cons}")
    A("    s_cbranch_scc1 L_h2")
    A("    v_and_b32 v15, 7, v0")
    A("    v_lshlrev_b32 v15, 7, v15")
    if o.fast:
        A("    v_and_b32 v14, 8, v0")
        A("    v_lshl_add_u32 v15, v14, 1, v15")
    A(f"    s_add_u32 s7, s4, {OFF_ML}")
    A("    s_mov_b32 s92, 0x40000")
    A("L_poll_ml:")
    A("    buffer_load_dwordx4 v[24:27], v15, s[40:43], s7 offen sc1")
    A("    s_waitcnt vmcnt(0)")
    A("    v_cmp_ne_u64 vcc, s[36:37], v[26:27]")
    A("    s_cbranch_vccz L_ml_ok")
    A("    s_sleep 1")
    A("    s_sub_u32 s92, s92, 1")
    A("    s_cbranch_scc0 L_poll_ml")
    A("L_ml_ok:")
    stamp(2)
    others = [s for s in range(8) if s != cons]
    if o.fast:
        for s in others:
            A(f"    v_readlane_b32 s{72+s if False else 12+s}, v24, {8+s}")
        A("    v_mov_b32_dpp v24, v24 row_shr:8 row_mask:0xf bank_mask:0xc")
        A("    v_mov_b32_dpp v25, v25 row_shr:8 row_mask:0xf bank_mask:0xc")
        for s in others:
            A(f"    s_cmp_eq_u32 s{12+s}, s20")
            A(f"    s_cselect_b32 s{12+s}, {OFF_A}, 0")
            A(f"    s_addk_i32 s{12+s}, {1024*s}")
    A("    v_max_f32 v28, v24, v10")
    for step_ in (4, 2, 1):
        A("    s_nop 1")
        A(f"    v_max_f32_dpp v28, v28, v28 row_ror:{step_} {DPPF}")
    A("    v_sub_f32 v24, v24, v28")
    A("    v_sub_f32 v10, v10, v28")
    A("    v_exp_f32 v24, v24                        ; w_s")
    A("    v_exp_f32 v10, v10                        ; w_tree")
    A("    s_nop 0")
    A("    v_mul_f32 v25, v24, v25")
    for step_ in (4, 2, 1):
        A("    s_nop 1")
        A(f"    v_add_f32_dpp v25, v25, v25 row_ror:{step_} {DPPF}")
    A("    v_add_f32 v25, v25, v10                   ; L")
    A("    v_rcp_f32 v25, v25")
    A("    s_nop 0")
    A("    v_mul_f32 v24, v24, v25                   ; W_s")
    A("    v_mul_f32 v10, v10, v25                   ; W_tree")
    A("    v_mul_f32 v11, v11, v10")
    A("    v_mul_f32 v12, v12, v10")
    for s in range(8):
        A(f"    v_readlane_b32 s{80+s}, v24, {s}")
    A("    v_add_u32 v15, s4, v1")
    A("    s_nop 0")
    A(f"    v_mul_f32 v16, s{80+cons}, v16")
    A("L_h2:")
    A("    s_nop 1")
    for w in range(NW):
        A(f"    v_readlane_b32 s{96+w-72 if False else 24+w}, v16, {w}")
    A("    v_lshlrev_b32 v14, 3, v0")
    A("    s_barrier")
    if o.probe is not None: A("    s_memrealtime s[66:67]")
    stamp(3)
    for w in range(NW):
        A(f"    ds_read_b64 v[{32+2*w}:{33+2*w}], v14 offset:{lds_o+512*w}")
    for w in range(NW):
        A(f"    s_waitcnt lgkmcnt({NW-1-w})")
        if w == 0:
            A(f"    v_mul_f32 v20, s24, v32")
            A(f"    v_mul_f32 v21, s24, v33")
        else:
            A(f"    v_fmac_f32 v20, s{24+w}, v{32+2*w}")
            A(f"    v_fmac_f32 v21, s{24+w}, v{33+2*w}")
    A(f"    s_cmp_eq_u32 s23, {cons}")
    A("    s_cbranch_scc1 L_final")
    if o.fast:
        A(f"    s_movk_i32 s7, {OFF_A}")
        A("    buffer_store_dwordx4 v[20:23], v2, s[40:43], s7 offen")
    A("    buffer_store_dwordx4 v[20:23], v2, s[40:43], 0 offen sc1")
    if stamps:
        stamp(4)
        emit_stamps(A, NW)
    if o.probe is not None: A("    s_branch L_probe")
    A("    s_endpgm")
    A("L_final:")
    A("    v_add_f32 v11, v11, v20")
    A("    v_add_f32 v12, v12, v21")
    stamp(4)
    A("    s_mov_b32 s92, 0x40000")
    if not o.fast: A("    s_movk_i32 s7, 4096")
    A("L_poll_o:")
    for j, s in enumerate(others):
        if o.fast:
            A(f"    buffer_load_dwordx4 v[{32+4*j}:{35+4*j}], v15, s[40:43], s{12+s} offen sc1")
        else:
            off = 1024 * s; so = "0"
            if off >= 4096: so = "s7"; off -= 4096
            A(f"    buffer_load_dwordx4 v[{32+4*j}:{35+4*j}], v15, s[40:43], {so} offen offset:{off} sc1")
    for j, s in enumerate(others):
        A(f"    s_waitcnt vmcnt({6-j})")
        A(f"    v_cmp_ne_u64 s[{24+2*(j&1) if j else 38}:{25+2*(j&1) if j else 39}], s[36:37], v[{34+4*j}:{35+4*j}]")
        if j == 0:
            A(f"    v_fma_f32 v20, s{80+s}, v{32+4*j}, v11")
            A(f"    v_fma_f32 v21, s{80+s}, v{33+4*j}, v12")
        else:
            A(f"    v_fmac_f32 v20, s{80+s}, v{32+4*j}")
            A(f"    v_fmac_f32 v21, s{80+s}, v{33+4*j}")
            if j == 6: A("    v_cvt_pk_bf16_f32 v20, v20, v21")
            A(f"    s_or_b64 s[38:39], s[38:39], s[{24+2*(j&1)}:{25+2*(j&1)}]")
    A("    s_cbranch_scc0 L_o_ok")
    A("    s_sub_u32 s92, s92, 1")
    A("    s_cbranch_scc0 L_poll_o")
    A("L_o_ok:")
    osc = " sc1" if o.outsc1 else ""
    A(f"    buffer_store_dword v20, v7, s[48:51], 0 offen{osc}")
    A("    s_mov_b64 exec, 1")
    A(f"    buffer_store_dwordx2 v[22:23], v9, s[40:43], 0 offen{osc}")
    if stamps:
        stamp(5)
        emit_stamps(A, NW)
    if o.probe is not None: emit_probe(A, o.probe)
    A("L_end:")
    A("    s_endpgm")
    nv = max(vEnd, 64)
    A('.section .rodata,"a"'); A(".p2align 6"); A(f".amdhsa_kernel {NAME}_kernel")
    A(f"  .amdhsa_next_free_vgpr {nv}"); A("  .amdhsa_next_free_sgpr 96"); A(f"  .amdhsa_accum_offset {(nv+3)//4*4}")
    A("  .amdhsa_group_segment_fixed_size 0"); A("  .amdhsa_kernarg_size 72"); A("  .amdhsa_user_sgpr_count 2")
    A("  .amdhsa_user_sgpr_kernarg_segment_ptr 1"); A("  .amdhsa_system_sgpr_workgroup_id_x 1"); A(".end_amdhsa_kernel")
    return "\n".join(out) + "\n"


def emit_stamps(A, NW):
    A("    s_memrealtime s[78:79]")
    A("    s_load_dwordx2 s[60:61], s[0:1], 64")
    A("    s_waitcnt lgkmcnt(0)")
    A(f"    s_mul_i32 s4, s2, {NW+1}")
    A("    s_add_u32 s4, s4, s3")
    A("    s_lshl_b32 s4, s4, 6")
    A("    s_add_u32 s4, s4, 0x100000")
    A("    s_mov_b64 exec, -1")
    A("    v_mov_b32 v0, s4")
    A("    s_getreg_b32 s5, hwreg(HW_REG_XCC_ID)")
    A("    s_getreg_b32 s6, hwreg(HW_REG_HW_ID)")
    for i in range(8): A(f"    v_mov_b32 v{40+i}, s{64+2*i}")
    A("    v_mov_b32 v48, s5"); A("    v_mov_b32 v49, s6")
    A("1:")
    A("    s_sleep 32")
    A("    s_memrealtime s[62:63]")
    A("    s_waitcnt lgkmcnt(0)")
    A("    s_sub_u32 s62, s62, s64")
    A("    s_cmp_lt_u32 s62, 2000")
    A("    s_cbranch_scc1 1b")
    A("    s_mov_b64 exec, 1")
    A("    global_store_dwordx4 v0, v[40:43], s[60:61]")
    A("    global_store_dwordx4 v0, v[44:47], s[60:61] offset:16")
    A("    global_store_dwordx2 v0, v[48:49], s[60:61] offset:32")

from gen import emit_probe

if __name__ == "__main__":
    ap = argparse.ArgumentParser()
    ap.add_argument("--pol", default="nt")
    ap.add_argument("--stamps", action="store_true")
    ap.add_argument("--cons", type=int, default=7)
    ap.add_argument("--pat", default="p5")
    ap.add_argument("--map", default="xcd")
    ap.add_argument("--v1n", type=int, default=8)
    ap.add_argument("--mlbar", default="post")
    ap.add_argument("--prio", type=int, default=1)
    ap.add_argument("--fast", type=int, default=0)
    ap.add_argument("--outsc1", type=int, default=0)
    ap.add_argument("--probe", type=int, default=None)
    ap.add_argument("--lprobe", default=None)
    ap.add_argument("--lwg", type=int, default=-1)
    ap.add_argument("--lwave", type=int, default=0)
    ap.add_argument("--qpos", type=int, default=1)
    ap.add_argument("--fine", type=int, default=0)
    ap.add_argument("-o", default="-")
    a = ap.parse_args()
    s = gen(a)
    if a.o == "-": sys.stdout.write(s)
    else: open(a.o, "w").write(s)
```
